```python
import torch

def _softmax(x, axis=-1):
    return torch.softmax(x, dim=axis)
def _gelu(x):
    return torch.nn.functional.gelu(x, approximate="tanh")
def _silu(x):
    return torch.nn.functional.silu(x)
def _sigmoid(x):
    return torch.sigmoid(x)
def _layernorm(x, axis=-1, eps=1e-5):
    m = x.mean(dim=axis, keepdim=True)
    v = x.var(dim=axis, keepdim=True, unbiased=False)
    return (x - m) / torch.sqrt(v + eps)
def _scatter_add(tgt, idx, src, axis=0):
    return tgt.clone().index_add_(axis, idx, src)
def _segment_sum(src, seg, n):
    out = torch.zeros((n,) + src.shape[1:], dtype=src.dtype)
    return out.index_add_(0, seg, src)
def _pad(x, pw):
    flat = tuple(v for pair in reversed(pw) for v in pair)
    return torch.nn.functional.pad(x, flat)

kernel_name = 'concat_heads__mha_block__compressed_kv_cla__prompt'

def setup_inputs():

    _w = (lambda a: (lambda t: t.to(torch.bfloat16) if t.is_floating_point() else t)(torch.as_tensor(a)))
    def _A_setup():
        B, S, D, H = 1, 2048, 640, 32
        return {
            "x": _w((lambda *s: torch.randn(*s, dtype=torch.bfloat16) * 0.2)(B, S, D)),
            "wqkv": _w((lambda *s: torch.randn(*s, dtype=torch.bfloat16) * 0.2)(D, 3 * D)),
            "wo": _w((lambda *s: torch.randn(*s, dtype=torch.bfloat16) * 0.05)(D, D)),
        }
    _A_in = _A_setup()

    def _B_setup():
        B, H, Sq, Sk, D, M = 1, 32, 2048, 2048, 128, 640
        Dc = 4 * D
        return {
            "x": _w((lambda *s: torch.randn(*s, dtype=torch.bfloat16) * 0.4)(B, Sq, M)),
            "c_kv": _w((lambda *s: torch.randn(*s, dtype=torch.bfloat16) * 0.4)(B, Sk, Dc)),
            "w_q": _w((lambda *s: torch.randn(*s, dtype=torch.bfloat16) * 3.2)(M, H, D) * (M ** -0.5)),
            "w_uk": _w((lambda *s: torch.randn(*s, dtype=torch.bfloat16) * 3.2)(Dc, H, D) * (Dc ** -0.5)),
            "w_uv": _w((lambda *s: torch.randn(*s, dtype=torch.bfloat16) * 0.4)(Dc, H, D) * (Dc ** -0.5)),
            "w_o": _w((lambda *s: torch.randn(*s, dtype=torch.bfloat16) * 0.4)(H, D, M) * ((H * D) ** -0.5)),
        }
    _B_in = _B_setup()

    return {
        "A_x": _A_in["x"],
        "A_wqkv": _A_in["wqkv"],
        "A_wo": _A_in["wo"],
        "B_x": _B_in["x"],
        "B_c_kv": _B_in["c_kv"],
        "B_w_q": _B_in["w_q"],
        "B_w_uk": _B_in["w_uk"],
        "B_w_uv": _B_in["w_uv"],
        "B_w_o": _B_in["w_o"],
    }

def reference(A_x, A_wqkv, A_wo, B_x, B_c_kv, B_w_q, B_w_uk, B_w_uv, B_w_o):
    def _A_ref(x, wqkv, wo):
        B, S, D = x.shape
        H = 32
        Dh = D // H
        qkv = (lambda x, *d: x.permute(*d))((x @ wqkv).reshape(B, S, 3, H, Dh), 2, 0, 3, 1, 4)
        q, k, v = qkv[0], qkv[1], qkv[2]
        scores = torch.einsum("bhqd,bhkd->bhqk", q, k) * (Dh ** -0.5)
        p = _softmax(scores, axis=-1)
        o = torch.einsum("bhqk,bhkd->bhqd", p, v)
        return (lambda x, *d: x.permute(*d))(o, 0, 2, 1, 3).reshape(B, S, D) @ wo

    def _B_ref(x, c_kv, w_q, w_uk, w_uv, w_o):
        B, Sq, M = x.shape[0], x.shape[1], x.shape[2]
        Sk = c_kv.shape[1]
        H, D = w_q.shape[1], w_q.shape[2]
        q = torch.einsum("bqm,mhd->bhqd", x, w_q)
        k = torch.einsum("bkc,chd->bhkd", c_kv, w_uk)
        v = torch.einsum("bkc,chd->bhkd", c_kv, w_uv)
        scores = torch.einsum("bhqd,bhkd->bhqk", q, k) * (D ** -0.5)
        off = Sk - Sq
        qi = torch.arange(Sq)[:, None]
        kj = torch.arange(Sk)[None, :]
        cmask = kj <= (qi + off)
        scores = torch.where(cmask[None, None], scores, -1e9)
        p = _softmax(scores, axis=-1)
        ctx = torch.einsum("bhqk,bhkd->bhqd", p, v)
        return torch.einsum("bhqd,hdm->bqm", ctx, w_o)

    a = _A_ref(A_x, A_wqkv, A_wo)
    b = _B_ref(B_x, B_c_kv, B_w_q, B_w_uk, B_w_uv, B_w_o)
    return torch.concatenate([a, b], axis=-1)
```

```python
from common import *

VRA = 16
VRB = 24
VDA = 28
VL = 36
VMX = 38
VT = 4
QF = 40
SA = 72
RING = 232
NRING = 6

class Cfg:
    pass

def cfgB():
    c = Cfg(); c.nq = 1; c.nt = 8; c.ndt = 4
    c.S = 72; c.NEG = 104; c.P = 120; c.O = 136; c.isA = False
    return c

def cfgA():
    c = Cfg(); c.nq = 2; c.nt = 2; c.ndt = 1
    c.S = 72; c.NEG = 136; c.P = 168; c.O = 200; c.isA = True
    return c

class Ring:
    def __init__(self): self.i = 0
    def next(self):
        r = RING + 4 * (self.i % NRING); self.i += 1; return r

def S(c, qs, ks): return c.S + (qs * 2 + ks) * 16

def step(a, c, buf, u, masked, slow_labels):
    ring = Ring()
    kreads = [(ks, t) for ks in range(2) for t in range(c.nt)]
    regs = {}
    def kread(ks, t):
        r = ring.next(); regs[(ks, t)] = r
        if not c.isA:
            a(f"ds_read_b128 {vr(r)}, v{VRA+t} offset:{buf*32768 + ks*8192}")
            return 1
        off = buf * 16384 + (u * 64 + ks * 32) * 40
        if t == 0:
            a(f"ds_read_b64 {vr(r,2)}, v{VRB} offset:{off}\nds_read_b64 {vr(r+2,2)}, v{VRB} offset:{off+8}")
            return 2
        a(f"ds_read_b64 {vr(r,2)}, v{VRB+1} offset:{off}\nv_mov_b32 v{r+2}, 0\nv_mov_b32 v{r+3}, 0")
        return 1
    AHEAD = 3
    pend = []
    for i in range(min(AHEAD, len(kreads))):
        pend.append(kread(*kreads[i]))
    for i, (ks, t) in enumerate(kreads):
        if i + AHEAD < len(kreads):
            pend.append(kread(*kreads[i + AHEAD]))
        pend.pop(0)
        a(f"s_waitcnt lgkmcnt({sum(pend)})")
        for qs in range(c.nq):
            d = S(c, qs, ks)
            cin = vr(c.NEG + 16 * qs, 16) if t == 0 else vr(d, 16)
            a(f"v_mfma_f32_32x32x16_bf16 {vr(d,16)}, {vr(regs[(ks,t)])}, {vr(QF + (qs*c.nt + t)*4)}, {cin}")
    vreads = [(tt, dt) for tt in range(4) for dt in range(c.ndt)]
    def vread(tt, dt):
        r = ring.next(); regs[('v', tt, dt)] = r
        if not c.isA:
            a(f"ds_read_b128 {vr(r)}, v{VRB+tt} offset:{buf*32768 + 16384 + dt*4096}")
        else:
            a(f"ds_read_b128 {vr(r)}, v{VRA+u*4+tt} offset:{buf*16384 + 8192}")
    nv = 0
    for i in range(min(AHEAD, len(vreads))):
        vread(*vreads[i]); nv += 1
    a("s_nop 7\ns_nop 3")
    if masked:
        for ks in range(2):
            for r in range(16):
                k = ks * 32 + 8 * (r >> 2) + (r & 3)
                a(f"v_cmp_gt_i32 vcc, {k}, v3\ns_nop 1\nv_cndmask_b32 v{S(c,0,ks)+r}, v{S(c,0,ks)+r}, v2, vcc")
    for qs in range(c.nq):
        b = S(c, qs, 0)
        m0, m1 = VMX + qs, VT + qs
        a(f"v_max3_f32 v{m0}, v{b}, v{b+1}, v{b+2}\nv_max3_f32 v{m1}, v{b+3}, v{b+4}, v{b+5}")
        for i in range(6, 30, 4):
            a(f"v_max3_f32 v{m0}, v{m0}, v{b+i}, v{b+i+1}\nv_max3_f32 v{m1}, v{m1}, v{b+i+2}, v{b+i+3}")
        a(f"v_max3_f32 v{m0}, v{m0}, v{b+30}, v{b+31}\nv_max_f32 v{m0}, v{m0}, v{m1}")
    if c.nq == 2:
        a(f"v_max_f32 v{VT+2}, v{VMX}, v{VMX+1}\nv_cmp_lt_f32 vcc, s30, v{VT+2}")
    else:
        a(f"v_cmp_lt_f32 vcc, s30, v{VMX}")
    Ls, Lr = a.uniq("slow"), a.uniq("ret")
    slow_labels.append((Ls, Lr))
    a(f"s_nop 1\ns_cbranch_vccnz {Ls}")
    a.label(Lr)
    for qs in range(c.nq):
        for ks in range(2):
            b = S(c, qs, ks)
            for r in range(16):
                a(f"v_exp_f32 v{b+r}, v{b+r}")
            if not c.isA:
                for r in range(16):
                    a(f"v_add_f32 v{VL+(r&1)}, v{VL+(r&1)}, v{b+r}")
            p = c.P + (qs * 2 + ks) * 8
            for r in range(8):
                a(f"v_cvt_pk_bf16_f32 v{p+r}, v{b+2*r}, v{b+2*r+1}")
    for i, (tt, dt) in enumerate(vreads):
        if nv < len(vreads):
            vread(*vreads[nv]); nv += 1
        a(f"s_waitcnt lgkmcnt({nv - 1 - i})")
        for qs in range(c.nq):
            o = c.O + (qs * c.ndt + dt) * 16
            p = c.P + (qs * 2 + (tt >> 1)) * 8 + (tt & 1) * 4
            a(f"v_mfma_f32_32x32x16_bf16 {vr(o,16)}, {vr(regs[('v',tt,dt)])}, {vr(p)}, {vr(o,16)}")

def slow_path(a, c, Ls, Lr):
    a.label(Ls)
    for qs in range(c.nq):
        m = VMX + qs
        a(f"""v_mov_b32 v{VT}, v{m}
        v_mov_b32 v{VT+1}, v{m}
        s_nop 1
        v_permlane32_swap_b32 v{VT}, v{VT+1}
        v_max_f32 v{VT}, v{VT}, v{VT+1}
        v_max_f32 v{VT}, s31, v{VT}
        v_max_f32 v{VT+1}, 0, v{VT}
        v_sub_f32 v{VT+1}, 0, v{VT+1}
        v_exp_f32 v{VT+1}, v{VT+1}""")
        for r in range(16):
            a(f"v_sub_f32 v{c.NEG+16*qs+r}, v{c.NEG+16*qs+r}, v{VT}")
        for r in range(32):
            a(f"v_sub_f32 v{S(c,qs,0)+r}, v{S(c,qs,0)+r}, v{VT}")
        for r in range(16 * c.ndt):
            a(f"v_mul_f32 v{c.O+16*c.ndt*qs+r}, v{c.O+16*c.ndt*qs+r}, v{VT+1}")
        if not c.isA:
            a(f"v_mul_f32 v{VL}, v{VL}, v{VT+1}\nv_mul_f32 v{VL+1}, v{VL+1}, v{VT+1}")
    a(f"""s_mov_b32 s30, 8.0
    s_mov_b32 s31, 0
    s_branch {Lr}""")

def rd_addr_256(a):
    a("""v_and_b32 v4, 31, v1
    v_and_b32 v5, 15, v1
    v_xor_b32 v5, v5, v8
    v_lshlrev_b32 v4, 8, v4""")
    for t in range(8):
        a(f"v_xor_b32 v6, {2*t}, v5\nv_lshl_add_u32 v{VRA+t}, v6, 4, v4")

def init_state(a, c):
    for r in range(16 * c.nq):
        a(f"v_mov_b32 v{c.NEG+r}, 0")
    for r in range(16 * c.ndt * c.nq):
        a(f"v_mov_b32 v{c.O+r}, 0")
    a(f"""v_mov_b32 v{VL}, 0
    v_mov_b32 v{VL+1}, 0
    s_mov_b32 s30, 0xff7fffff
    s_mov_b32 s31, 0xff7fffff""")

def gen_attn(a):
    name = "attn_kernel"
    kernel_header(a, name)
    a("""s_cmp_ge_u32 s2, 768
    s_cbranch_scc1 at_end
    s_load_dwordx2 s[4:5], s[0:1], 88
    v_and_b32 v1, 63, v0
    v_lshrrev_b32 v2, 6, v0
    v_lshrrev_b32 v8, 5, v1
    v_readfirstlane_b32 s27, v2
    s_and_b32 s20, s2, 31
    s_waitcnt lgkmcnt(0)""")
    srd(a, 8, 4, WS_SIZE)
    a("s_cmp_ge_u32 s2, 512\ns_cbranch_scc1 at_A")
    c = cfgB()
    a(f"""s_lshr_b32 s21, s2, 5
    s_sub_u32 s21, 15, s21
    s_lshl_b32 s26, s27, 12
    s_lshl_b32 s22, s21, 7
    s_lshl_b32 s36, s27, 5
    s_add_u32 s22, s22, s36
    v_and_b32 v4, 31, v1
    v_add_u32 v9, s22, v4
    v_lshlrev_b32 v5, 13, v9
    s_lshl_b32 s36, s20, 8
    v_lshl_add_u32 v5, v8, 4, v5
    v_add_u32 v5, s36, v5
    v_mov_b32 v15, v5""")
    for t in range(8):
        a(f"buffer_load_dwordx4 {vr(QF+4*t)}, v5, s[8:11], 0 offen offset:{t*32}")
    rd_addr_256(a)
    a("""v_and_b32 v4, 31, v1
    v_bfe_u32 v5, v1, 1, 3
    v_xor_b32 v5, v5, v8
    v_lshlrev_b32 v4, 7, v4""")
    for tt in range(4):
        a(f"v_xor_b32 v6, {2*tt}, v5\nv_lshl_add_u32 v{VRB+tt}, v6, 4, v4")
    a("""v_lshrrev_b32 v4, 4, v1
    v_and_b32 v5, 15, v1
    s_lshl_b32 s36, s20, 8""")
    a(f"s_add_u32 s36, s36, {WS_KB}")
    for i in range(4):
        a(f"""s_lshl_b32 s37, s27, 4
        s_add_u32 s37, s37, {4*i}
        v_add_u32 v6, s37, v4
        v_and_b32 v7, 15, v6
        v_xor_b32 v7, v7, v5
        v_lshlrev_b32 v6, 13, v6
        v_lshl_add_u32 v6, v7, 4, v6
        v_add_u32 v{VDA+i}, s36, v6""")
    a(f"""v_lshrrev_b32 v4, 3, v1
    v_and_b32 v5, 7, v1
    s_lshl_b32 s36, s20, 19
    s_add_u32 s36, s36, {WS_VTB}""")
    for i in range(4):
        a(f"""s_lshl_b32 s37, s27, 5
        s_add_u32 s37, s37, {8*i}
        v_add_u32 v6, s37, v4
        v_bfe_u32 v7, v6, 1, 3
        v_xor_b32 v7, v7, v5
        v_lshlrev_b32 v6, 12, v6
        v_lshl_add_u32 v6, v7, 4, v6
        v_add_u32 v{VDA+4+i}, s36, v6""")
    init_state(a, c)
    def loadsB(buf):
        for i in range(4):
            a(f"s_add_u32 m0, s26, {buf*32768 + i*1024}\ns_nop 0\nbuffer_load_dwordx4 v{VDA+i}, s[8:11], s23 offen lds")
        for i in range(4):
            a(f"s_add_u32 m0, s26, {buf*32768 + 16384 + i*1024}\ns_nop 0\nbuffer_load_dwordx4 v{VDA+4+i}, s[8:11], s24 offen lds")
        a(f"s_add_u32 s23, s23, {64*8192}\ns_add_u32 s24, s24, 128")
    a(f"""s_mov_b32 s23, 0
    s_mov_b32 s24, 0
    v_mov_b32 v2, 0xf149f2ca
    s_lshl_b32 s36, s21, 7
    v_lshlrev_b32 v3, 2, v8
    v_sub_u32 v3, v9, v3
    v_subrev_u32 v3, s36, v3""")
    loadsB(0)
    slow = []
    a("s_cmp_eq_u32 s21, 0\ns_cbranch_scc1 atB_tail")
    a.label("atB_loop")
    a("s_waitcnt vmcnt(0)\ns_barrier")
    loadsB(1)
    step(a, c, 0, 0, False, slow)
    a("s_waitcnt vmcnt(0)\ns_barrier")
    loadsB(0)
    step(a, c, 1, 0, False, slow)
    a("s_sub_u32 s21, s21, 1\ns_cmp_lg_u32 s21, 0\ns_cbranch_scc1 atB_loop")
    a.label("atB_tail")
    a("s_waitcnt vmcnt(0)\ns_barrier")
    loadsB(1)
    step(a, c, 0, 0, True, slow)
    a("v_subrev_u32 v3, 64, v3\ns_waitcnt vmcnt(0)\ns_barrier")
    step(a, c, 1, 0, True, slow)
    a(f"""v_add_f32 v{VL}, v{VL}, v{VL+1}
    v_mov_b32 v{VL+1}, v{VL}
    s_nop 1
    v_permlane32_swap_b32 v{VL}, v{VL+1}
    v_add_f32 v{VL}, v{VL}, v{VL+1}
    v_rcp_f32 v{VL}, v{VL}
    v_add_u32 v15, {WS_CTX - WS_QB}, v15
    s_nop 7""")
    k = 0
    for dt in range(4):
        for t in range(2):
            T = SA + 4 * (k & 3); k += 1
            o = c.O + dt * 16 + 8 * t
            for r in range(8):
                a(f"v_mul_f32 v{o+r}, v{o+r}, v{VL}")
            for r in range(4):
                a(f"v_cvt_pk_bf16_f32 v{T+r}, v{o+2*r}, v{o+2*r+1}")
            a(f"buffer_store_dwordx4 {vr(T)}, v15, s[8:11], 0 offen offset:{dt*64+t*32}")
    a("s_endpgm")
    for Ls, Lr in slow:
        slow_path(a, c, Ls, Lr)
    a.label("at_A")
    c = cfgA()
    a(f"""s_sub_u32 s21, s2, 512
    s_lshr_b32 s21, s21, 5
    s_lshl_b32 s22, s21, 8
    s_lshl_b32 s36, s27, 6
    s_add_u32 s22, s22, s36
    v_and_b32 v4, 31, v1
    v_add_u32 v9, s22, v4
    s_lshl_b32 s36, s20, 11
    v_add_u32 v5, s36, v9
    v_mul_u32_u24 v5, 40, v5
    v_add_u32 v5, {WS_QA}, v5
    v_lshl_add_u32 v6, v8, 4, v5
    v_cmp_eq_u32 vcc, 0, v8""")
    for qs in range(2):
        q = QF + qs * 8
        a(f"""buffer_load_dwordx2 {vr(q,2)}, v6, s[8:11], 0 offen offset:{qs*1280}
        buffer_load_dwordx2 {vr(q+2,2)}, v6, s[8:11], 0 offen offset:{qs*1280+8}
        buffer_load_dwordx2 {vr(q+4,2)}, v5, s[8:11], 0 offen offset:{qs*1280+32}
        v_mov_b32 v{q+6}, 0
        v_mov_b32 v{q+7}, 0""")
    a("s_waitcnt vmcnt(0)")
    for qs in range(2):
        q = QF + qs * 8
        a(f"v_cndmask_b32 v{q+4}, 0, v{q+4}, vcc\nv_cndmask_b32 v{q+5}, 0, v{q+5}, vcc")
    rd_addr_256(a)
    a(f"""v_and_b32 v4, 31, v1
    v_mul_u32_u24 v4, 40, v4
    v_lshl_add_u32 v{VRB}, v8, 4, v4
    v_add_u32 v{VRB+1}, 32, v4""")
    a(f"""v_lshlrev_b32 v4, 2, v1
    v_mov_b32 v5, 0x3f803f80
    ds_write_b32 v4, v5 offset:{8192 + 20*256}
    ds_write_b32 v4, v5 offset:{16384 + 8192 + 20*256}""")
    for i in range(3):
        Lv, Ld = a.uniq("slv"), a.uniq("sld")
        a(f"""s_mul_i32 s36, s27, 3
        s_add_u32 s36, s36, {i}
        s_cmp_ge_u32 s36, 10
        s_cselect_b32 s37, 10, 0
        s_sub_u32 s36, s36, s37
        s_mov_b32 s{40+i}, 0
        s_cmp_ge_u32 s36, 5
        s_cbranch_scc1 {Lv}
        s_lshl_b32 s{46+i}, s36, 10
        s_mov_b32 s{43+i}, 5120
        s_mul_i32 s37, s20, 81920
        s_add_u32 s37, s37, s{46+i}
        s_add_u32 s37, s37, {WS_KA}
        v_lshl_add_u32 v{VDA+i}, v1, 4, s37
        s_branch {Ld}""")
        a.label(Lv)
        a(f"""s_sub_u32 s36, s36, 5
        s_lshl_b32 s{46+i}, s36, 10
        s_add_u32 s{46+i}, s{46+i}, 8192
        s_mov_b32 s{43+i}, 256
        s_lshl_b32 s36, s36, 2
        v_lshrrev_b32 v4, 4, v1
        v_add_u32 v4, s36, v4
        v_and_b32 v5, 15, v4
        v_and_b32 v6, 15, v1
        v_xor_b32 v5, v5, v6
        s_mul_i32 s37, s20, 20
        v_add_u32 v4, s37, v4
        v_lshlrev_b32 v4, 12, v4
        v_lshl_add_u32 v4, v5, 4, v4
        v_add_u32 v{VDA+i}, {WS_VTA}, v4""")
        a.label(Ld)
    init_state(a, c)
    def loadsA(buf):
        for i in range(3):
            a(f"""s_add_u32 m0, s{46+i}, {buf*16384}
            s_nop 0
            buffer_load_dwordx4 v{VDA+i}, s[8:11], s{40+i} offen lds
            s_add_u32 s{40+i}, s{40+i}, s{43+i}""")
    loadsA(0)
    slow = []
    a("s_mov_b32 s21, 8\ns_waitcnt lgkmcnt(0)")
    a.label("atA_loop")
    a("s_waitcnt vmcnt(0)\ns_barrier")
    loadsA(1)
    step(a, c, 0, 0, False, slow)
    step(a, c, 0, 1, False, slow)
    a("s_waitcnt vmcnt(0)\ns_barrier\ns_sub_u32 s21, s21, 1\ns_cmp_eq_u32 s21, 0\ns_cbranch_scc1 atA_nold")
    loadsA(0)
    a.label("atA_nold")
    step(a, c, 1, 0, False, slow)
    step(a, c, 1, 1, False, slow)
    a("s_cmp_lg_u32 s21, 0\ns_cbranch_scc1 atA_loop")
    a(f"""s_nop 7
    s_nop 7
    v_mul_u32_u24 v5, 1280, v9
    s_mul_i32 s36, s20, 40
    s_add_u32 s36, s36, {WS_OA}
    v_lshl_add_u32 v5, v8, 3, v5
    v_add_u32 v5, s36, v5""")
    for qs in range(2):
        o = c.O + qs * 16
        a(f"""v_mov_b32 v6, v{o+8}
        v_mov_b32 v7, v{o+8}
        s_nop 1
        v_permlane32_swap_b32 v6, v7
        v_rcp_f32 v7, v7
        s_nop 0""")
        for r in range(12):
            a(f"v_mul_f32 v{o+r}, v{o+r}, v7")
        for j in range(3):
            T = SA + 2 * (qs * 3 + j)
            a(f"v_cvt_pk_bf16_f32 v{T}, v{o+4*j}, v{o+4*j+1}\nv_cvt_pk_bf16_f32 v{T+1}, v{o+4*j+2}, v{o+4*j+3}")
            if j == 2:
                a("s_mov_b32 exec_hi, 0")
            a(f"buffer_store_dwordx2 {vr(T,2)}, v5, s[8:11], 0 offen offset:{j*16}")
            if j == 2:
                a("s_mov_b32 exec_hi, -1")
        if qs == 0:
            a(f"v_add_u32 v5, {32*1280}, v5")
    a("s_endpgm")
    for Ls, Lr in slow:
        slow_path(a, c, Ls, Lr)
    a.label("at_end")
    a("s_endpgm")
    return kernel_desc(name, 256)
```

```python
import math
MB = 1 << 20
WS_QB, WS_KB, WS_VTB, WS_CTX = 0, 16 * MB, 32 * MB, 48 * MB
WS_QA = 64 * MB
WS_KA = WS_QA + 32 * 2048 * 40
WS_VTA = 70 * MB
WS_OA = 73 * MB
WS_PART = 80 * MB
WS_SIZE = 256 * MB
LOG2E = 1.4426950408889634
import struct
def f32(x):
    return "0x%08x" % struct.unpack("<I", struct.pack("<f", x))[0]

class Asm:
    def __init__(self):
        self.l = []
        self.n = 0
    def __call__(self, s):
        for line in s.strip("\n").split("\n"):
            self.l.append("    " + line.strip())
    def label(self, s):
        self.l.append(s + ":")
    def uniq(self, p="L"):
        self.n += 1
        return "%s_%d" % (p, self.n)
    def text(self):
        return "\n".join(self.l) + "\n"

def vr(a, n=4):
    return "v[%d:%d]" % (a, a + n - 1)

def srd(a, d, ptr, size):
    a(f"""s_mov_b32 s{d}, s{ptr}
    s_and_b32 s{d+1}, s{ptr+1}, 0xffff
    s_mov_b32 s{d+2}, {size}
    s_mov_b32 s{d+3}, 0x00020000""")

def kernel_header(a, name):
    a.l.append(f".globl {name}")
    a.l.append(".p2align 8")
    a.l.append(f".type {name},@function")
    a.label(name)

def kernel_desc(name, vgpr, sgpr=102):
    acc = (vgpr + 3) // 4 * 4
    return f""".amdhsa_kernel {name}
  .amdhsa_next_free_vgpr {vgpr}
  .amdhsa_next_free_sgpr {sgpr}
  .amdhsa_accum_offset {acc}
  .amdhsa_group_segment_fixed_size 0
  .amdhsa_kernarg_size 96
  .amdhsa_user_sgpr_count 2
  .amdhsa_user_sgpr_kernarg_segment_ptr 1
  .amdhsa_system_sgpr_workgroup_id_x 1
.end_amdhsa_kernel
"""
```

```python
from common import *

VXG, VWG, VXR, VWR = 10, 14, 18, 22
FR = 64
ACC = 128

def acc(i, j):
    return ACC + (i * 2 + j) * 16

def issue_loads(a, buf):
    for i in range(4):
        a(f"""s_add_u32 m0, s26, {buf*32768 + i*1024}
        s_nop 0
        buffer_load_dwordx4 v{VXG+i}, s[8:11], s23 offen lds""")
    for i in range(4):
        a(f"""s_add_u32 m0, s26, {buf*32768 + 16384 + i*1024}
        s_nop 0
        buffer_load_dwordx4 v{VWG+i}, s[12:15], s24 offen lds""")
    a("""s_add_u32 s23, s23, 128
    s_add_u32 s24, s24, s25""")

def read_frags(a, buf, kk, st, perm=False):
    b = FR + 16 * st
    for mi in range(2):
        a(f"ds_read_b128 {vr(b+4*mi)}, v{VXR+kk} offset:{buf*32768 + mi*4096}")
    for ni in range(2):
        for u in range(2):
            a(f"ds_read_b64_tr_b16 {vr(b+8+4*ni+2*u,2)}, v{VWR+ni} offset:{buf*32768 + 16384 + kk*4096 + u*(2048 if perm else 1024)}")

def compute(a, buf, orient, perm=False):
    read_frags(a, buf, 0, 0, perm)
    for kk in range(4):
        st = kk & 1
        if kk < 3:
            read_frags(a, buf, kk + 1, st ^ 1, perm)
            a("s_waitcnt lgkmcnt(6)")
        else:
            a("s_waitcnt lgkmcnt(0)")
        b = FR + 16 * st
        for i in range(2):
            for j in range(2):
                if orient == 'T':
                    A, B = b + 8 + 4 * i, b + 4 * j
                else:
                    A, B = b + 4 * i, b + 8 + 4 * j
                d = acc(i, j)
                a(f"v_mfma_f32_32x32x16_bf16 {vr(d,16)}, {vr(A)}, {vr(B)}, {vr(d,16)}")

def mainloop(a, orient, perm=False):
    issue_loads(a, 0)
    L, Lskip = a.uniq("gl"), a.uniq("gs")
    a.label(L)
    a("s_waitcnt vmcnt(0)\ns_barrier")
    issue_loads(a, 1)
    compute(a, 0, orient, perm)
    a("s_waitcnt vmcnt(0)\ns_barrier")
    a(f"s_sub_u32 s22, s22, 1\ns_cmp_eq_u32 s22, 0\ns_cbranch_scc1 {Lskip}")
    issue_loads(a, 0)
    a.label(Lskip)
    compute(a, 1, orient, perm)
    a(f"s_cmp_lg_u32 s22, 0\ns_cbranch_scc1 {L}")
    a("s_nop 15")

def setup(a, perm=False):
    a("""v_and_b32 v1, 63, v0
    v_lshrrev_b32 v2, 6, v0
    s_nop 0
    v_readfirstlane_b32 s27, v2
    s_lshl_b32 s26, s27, 12
    s_lshr_b32 s28, s27, 1
    s_and_b32 s29, s27, 1
    v_lshrrev_b32 v2, 3, v1
    v_and_b32 v3, 7, v1
    v_lshrrev_b32 v4, 4, v1
    v_and_b32 v5, 15, v1""")
    for i in range(4):
        a(f"""s_lshl_b32 s36, s27, 5
        s_add_u32 s36, s36, {i*8}
        s_add_u32 s36, s36, s30
        v_add_u32 v6, s36, v2
        v_mul_lo_u32 v6, v6, s20
        v_add_u32 v7, {(i&1)*4}, v4
        v_xor_b32 v7, v7, v3
        v_lshlrev_b32 v7, 4, v7
        v_add3_u32 v{VXG+i}, v6, v7, s41""")
    a("""v_lshlrev_b32 v7, 2, v4
    v_xor_b32 v7, v7, v5
    v_lshlrev_b32 v7, 4, v7
    s_lshl_b32 s37, s31, 1""")
    for i in range(4):
        a(f"""s_lshl_b32 s36, s27, 4
        s_add_u32 s36, s36, {i*4}
        v_add_u32 v6, s36, v4
        v_mul_lo_u32 v6, v6, s21
        v_add3_u32 v{VWG+i}, v6, v7, s37""")
    a("""v_and_b32 v6, 31, v1
    v_lshrrev_b32 v8, 5, v1
    s_lshl_b32 s36, s28, 6
    v_add_u32 v6, s36, v6
    v_bfe_u32 v7, v6, 1, 3
    v_xor_b32 v7, v7, v8
    v_lshlrev_b32 v6, 7, v6""")
    for kk in range(4):
        a(f"""v_xor_b32 v9, {2*kk}, v7
        v_lshl_add_u32 v{VXR+kk}, v9, 4, v6""")
    a(f"""v_bfe_u32 v6, v1, 2, 2
    v_and_b32 v7, 3, v1
    v_bfe_u32 v9, v1, 4, 1
    v_lshlrev_b32 v24, {2 if perm else 3}, v8
    v_add_u32 v24, v24, v6
    v_lshlrev_b32 v24, 8, v24
    v_lshrrev_b32 v25, 1, v7
    v_lshl_add_u32 v25, v9, 1, v25
    s_lshl_b32 s36, s29, 3
    v_add_u32 v25, s36, v25
    v_lshlrev_b32 v26, 2, v6
    v_xor_b32 v25, v25, v26
    v_and_b32 v7, 1, v7
    v_lshl_add_u32 v24, v7, 3, v24""")
    for ni in range(2):
        a(f"""v_xor_b32 v26, {4*ni}, v25
        v_lshl_add_u32 v{VWR+ni}, v26, 4, v24""")
    for r in range(64):
        a(f"v_mov_b32 v{ACC+r}, 0")

def cvt8(a, dst, src, scale=False):
    if scale:
        for r in range(8):
            a(f"v_mul_f32 v{src+r}, s40, v{src+r}")
    for r in range(4):
        a(f"v_cvt_pk_bf16_f32 v{dst+r}, v{src+2*r}, v{src+2*r+1}")

def epi_rowmajor_perm(a, ldo, scale):
    a(f"""v_and_b32 v2, 31, v1
    s_lshl_b32 s36, s28, 6
    s_add_u32 s36, s36, s30
    v_add_u32 v2, s36, v2
    v_mul_u32_u24 v2, {ldo}, v2
    s_lshl_b32 s36, s29, 7
    s_add_u32 s36, s36, s33
    v_lshlrev_b32 v3, 4, v8
    v_add3_u32 v2, v2, v3, s36
    v_add_u32 v3, {32*ldo}, v2""")
    k = 0
    for ni in range(2):
        for mi in range(2):
            for t in range(2):
                T = 24 + 4 * (k & 3); k += 1
                cvt8(a, T, acc(ni, mi) + 8 * t, scale)
                a(f"buffer_store_dwordx4 {vr(T)}, v{2+mi}, s[16:19], 0 offen offset:{ni*64+t*32}")

def epi_colmajor_perm(a):
    a(f"""v_and_b32 v2, 31, v1
    s_lshl_b32 s36, s29, 6
    v_add_u32 v2, s36, v2
    v_lshlrev_b32 v2, 12, v2
    s_lshl_b32 s36, s28, 6
    s_add_u32 s36, s36, s30
    s_lshl_b32 s36, s36, 1
    s_add_u32 s36, s36, s33
    v_lshlrev_b32 v3, 4, v8
    v_add3_u32 v2, v2, v3, s36
    v_add_u32 v3, {32*4096}, v2""")
    k = 0
    for mi in range(2):
        for ni in range(2):
            for t in range(2):
                T = 24 + 4 * (k & 3); k += 1
                cvt8(a, T, acc(mi, ni) + 8 * t)
                a(f"buffer_store_dwordx4 {vr(T)}, v{2+ni}, s[16:19], 0 offen offset:{mi*64+t*32}")

def epi_compact(a):
    a(f"""v_and_b32 v2, 31, v1
    s_lshl_b32 s36, s28, 6
    s_add_u32 s36, s36, s30
    v_add_u32 v2, s36, v2
    v_mul_u32_u24 v2, 40, v2
    v_add_u32 v2, s33, v2
    s_lshl_b32 s36, s29, 4
    s_add_u32 s36, s36, s35
    v_add_u32 v3, s36, v8""")
    k = 0
    for ni in range(2):
        for j in range(4):
            a(f"""v_add_u32 v4, {ni*8+2*j}, v3
            v_mul_u32_u24 v5, 0xcccd, v4
            v_lshrrev_b32 v5, 18, v5
            v_mul_u32_u24 v6, 5, v5
            v_sub_u32 v6, v4, v6
            v_mul_u32_u24 v5, 0x14000, v5
            v_lshl_add_u32 v5, v6, 3, v5
            v_add_u32 v{40+k}, v5, v2""")
            for mi in range(2):
                s = acc(ni, mi) + 4 * j
                T = 24 + 2 * ((2 * k + mi) & 7)
                for r in range(4):
                    a(f"v_mul_f32 v{s+r}, s40, v{s+r}")
                a(f"""v_cvt_pk_bf16_f32 v{T}, v{s}, v{s+1}
                v_cvt_pk_bf16_f32 v{T+1}, v{s+2}, v{s+3}
                buffer_store_dwordx2 {vr(T,2)}, v{40+k}, s[16:19], 0 offen offset:{mi*1280}""")
            k += 1

def epi_out(a, fp32):
    esz = 4 if fp32 else 2
    a(f"""v_and_b32 v2, 31, v1
    s_lshl_b32 s36, s28, 6
    s_add_u32 s36, s36, s30
    v_add_u32 v2, s36, v2
    v_mul_u32_u24 v2, 2560, v2
    s_mul_i32 s36, s29, {64*esz}
    s_add_u32 s36, s36, s33
    v_mul_u32_u24 v3, {4*esz}, v8
    v_add3_u32 v2, v2, v3, s36
    v_add_u32 v3, {32*2560}, v2""")
    k = 0
    for ni in range(2):
        for mi in range(2):
            for j in range(4):
                s = acc(ni, mi) + 4 * j
                off = (ni * 32 + 8 * j) * esz
                if fp32:
                    a(f"buffer_store_dwordx4 {vr(s)}, v{2+mi}, s[16:19], 0 offen offset:{off}")
                else:
                    T = 24 + 2 * (k & 7); k += 1
                    a(f"""v_cvt_pk_bf16_f32 v{T}, v{s}, v{s+1}
                    v_cvt_pk_bf16_f32 v{T+1}, v{s+2}, v{s+3}
                    buffer_store_dwordx2 {vr(T,2)}, v{2+mi}, s[16:19], 0 offen offset:{off}""")


def load_ptr(a, dst, slot):
    a(f"s_load_dwordx2 s[{dst}:{dst+1}], s[0:1], {slot*8}")

def tile_decode(a, base):
    a(f"""s_sub_u32 s35, s2, {base}
    s_and_b32 s30, s35, 15
    s_lshl_b32 s30, s30, 7
    s_lshr_b32 s35, s35, 4
    s_lshl_b32 s31, s35, 7""")

def gen_k1(a):
    name = "proj_kernel"
    kernel_header(a, name)
    cB = f32(128 ** -0.5 * LOG2E); cA = f32(20 ** -0.5 * LOG2E)
    a("""s_cmp_ge_u32 s2, 1776
    s_cbranch_scc1 k1_end
    s_load_dwordx2 s[42:43], s[0:1], 88
    s_mov_b32 s23, 0
    s_mov_b32 s24, 0
    s_mov_b32 s41, 0
    s_mov_b32 s40, 1.0
    s_cmp_ge_u32 s2, 240
    s_cbranch_scc1 k1_p1""")
    load_ptr(a, 4, 0); load_ptr(a, 6, 1)
    tile_decode(a, 0)
    a(f"""s_mov_b32 s20, 1280
    s_mov_b32 s21, 3840
    s_mov_b32 s25, {64*3840}
    s_mov_b32 s22, 5
    s_waitcnt lgkmcnt(0)""")
    srd(a, 8, 4, 2048*640*2); srd(a, 12, 6, 640*1920*2); srd(a, 16, 42, WS_SIZE)
    a(f"""s_cmp_ge_u32 s35, 10
    s_cbranch_scc1 k1_a_v
    s_mov_b32 s32, 1
    s_mov_b32 s33, {WS_KA}
    s_sub_u32 s35, s35, 5
    s_cmp_ge_i32 s35, 0
    s_cbranch_scc1 k1_a_k
    s_add_u32 s35, s35, 5
    s_mov_b32 s33, {WS_QA}
    s_mov_b32 s40, {cA}""")
    a.label("k1_a_k")
    a("s_lshl_b32 s35, s35, 5\ns_branch k1_T")
    a.label("k1_a_v")
    a(f"""s_sub_u32 s35, s35, 10
    s_lshl_b32 s33, s35, 19
    s_add_u32 s33, s33, {WS_VTA}
    s_branch k1_N""")
    a.label("k1_p1")
    a("s_cmp_ge_u32 s2, 752\ns_cbranch_scc1 k1_p2")
    load_ptr(a, 4, 3); load_ptr(a, 6, 5)
    tile_decode(a, 240)
    a(f"""s_mov_b32 s20, 1280
    s_mov_b32 s21, 8192
    s_mov_b32 s25, {64*8192}
    s_mov_b32 s22, 5
    s_mov_b32 s40, {cB}
    s_mov_b32 s32, 0
    s_lshl_b32 s33, s31, 1
    s_add_u32 s33, s33, {WS_QB}
    s_waitcnt lgkmcnt(0)""")
    srd(a, 8, 4, 2048*640*2); srd(a, 12, 6, 640*4096*2); srd(a, 16, 42, WS_SIZE)
    a("s_branch k1_T")
    a.label("k1_p2")
    load_ptr(a, 4, 4)
    a(f"""s_mov_b32 s20, 1024
    s_mov_b32 s21, 8192
    s_mov_b32 s25, {64*8192}
    s_mov_b32 s22, 4
    s_cmp_ge_u32 s2, 1264
    s_cbranch_scc1 k1_p3""")
    load_ptr(a, 6, 6)
    tile_decode(a, 752)
    a(f"""s_mov_b32 s32, 0
    s_lshl_b32 s33, s31, 1
    s_add_u32 s33, s33, {WS_KB}
    s_waitcnt lgkmcnt(0)""")
    srd(a, 8, 4, 2048*512*2); srd(a, 12, 6, 512*4096*2); srd(a, 16, 42, WS_SIZE)
    a("s_branch k1_T")
    a.label("k1_p3")
    load_ptr(a, 6, 7)
    tile_decode(a, 1264)
    a(f"""s_lshl_b32 s33, s31, 12
    s_add_u32 s33, s33, {WS_VTB}
    s_waitcnt lgkmcnt(0)""")
    srd(a, 8, 4, 2048*512*2); srd(a, 12, 6, 512*4096*2); srd(a, 16, 42, WS_SIZE)
    a.label("k1_N")
    setup(a)
    mainloop(a, 'N')
    epi_colmajor_perm(a)
    a("s_endpgm")
    a.label("k1_T")
    setup(a)
    mainloop(a, 'T')
    a("s_cmp_eq_u32 s32, 1\ns_cbranch_scc1 k1_compact")
    epi_rowmajor_perm(a, 8192, True)
    a("s_endpgm")
    a.label("k1_compact")
    epi_compact(a)
    a.label("k1_end")
    a("s_endpgm")
    return kernel_desc(name, 192)

def gen_k3(a):
    name = "oproj_kernel"
    kernel_header(a, name)
    a("""s_cmp_ge_u32 s2, 400
    s_cbranch_scc1 k3_end
    s_load_dwordx2 s[42:43], s[0:1], 88
    s_mov_b32 s21, 1280
    s_mov_b32 s25, 81920
    s_mov_b32 s23, 0
    s_cmp_ge_u32 s2, 320
    s_cbranch_scc1 k3_p1""")
    load_ptr(a, 6, 8)
    a(f"""s_mul_hi_u32 s44, s2, {(1<<32)//80 + 1}
    s_mul_i32 s45, s44, 80
    s_sub_u32 s35, s2, s45
    s_and_b32 s30, s35, 15
    s_lshl_b32 s30, s30, 7
    s_lshr_b32 s35, s35, 4
    s_lshl_b32 s31, s35, 7
    s_mov_b32 s20, 8192
    s_mov_b32 s22, 8
    s_lshl_b32 s41, s44, 11
    s_add_u32 s41, s41, {WS_CTX}
    s_mul_i32 s24, s44, {1024*1280}
    s_mul_i32 s33, s44, {2048*640*4}
    s_add_u32 s33, s33, {WS_PART}
    s_lshl_b32 s45, s31, 2
    s_add_u32 s33, s33, s45
    s_waitcnt lgkmcnt(0)""")
    srd(a, 8, 42, WS_SIZE); srd(a, 12, 6, 4096*640*2); srd(a, 16, 42, WS_SIZE)
    setup(a, True)
    mainloop(a, 'T', True)
    epi_out(a, True)
    a("s_endpgm")
    a.label("k3_p1")
    load_ptr(a, 6, 2); load_ptr(a, 4, 9)
    tile_decode(a, 320)
    a(f"""s_mov_b32 s20, 1280
    s_mov_b32 s22, 5
    s_mov_b32 s41, {WS_OA}
    s_mov_b32 s24, 0
    s_lshl_b32 s33, s31, 1
    s_waitcnt lgkmcnt(0)""")
    srd(a, 8, 42, WS_SIZE); srd(a, 12, 6, 640*640*2); srd(a, 16, 4, 2048*1280*2)
    setup(a)
    mainloop(a, 'T')
    epi_out(a, False)
    a.label("k3_end")
    a("s_endpgm")
    return kernel_desc(name, 192)

def gen_k4(a):
    name = "reduce_kernel"
    kernel_header(a, name)
    a(f"""s_cmp_ge_u32 s2, 640
    s_cbranch_scc1 k4_end
    s_load_dwordx2 s[4:5], s[0:1], 72
    s_load_dwordx2 s[6:7], s[0:1], 88
    s_lshl_b32 s3, s2, 8
    v_add_u32 v1, s3, v0
    v_lshlrev_b32 v2, 5, v1
    s_mov_b32 s20, {(1<<32)//80 + 1}
    v_mul_hi_u32 v3, v1, s20
    v_mul_u32_u24 v4, 80, v3
    v_sub_u32 v4, v1, v4
    v_mul_u32_u24 v3, 2560, v3
    v_lshl_add_u32 v3, v4, 4, v3
    s_waitcnt lgkmcnt(0)""")
    srd(a, 8, 4, 2048*1280*2); srd(a, 12, 6, WS_SIZE)
    for ks in range(4):
        a(f"""s_mov_b32 s{20+ks}, {WS_PART + ks*2048*640*4}
        buffer_load_dwordx4 {vr(8+8*ks)}, v2, s[12:15], s{20+ks} offen
        buffer_load_dwordx4 {vr(12+8*ks)}, v2, s[12:15], s{20+ks} offen offset:16""")
    a("s_waitcnt vmcnt(0)")
    for r in range(8):
        a(f"""v_add_f32 v{8+r}, v{8+r}, v{16+r}
        v_add_f32 v{24+r}, v{24+r}, v{32+r}""")
    for r in range(8):
        a(f"v_add_f32 v{8+r}, v{8+r}, v{24+r}")
    for r in range(4):
        a(f"v_cvt_pk_bf16_f32 v{40+r}, v{8+2*r}, v{9+2*r}")
    a("buffer_store_dwordx4 v[40:43], v3, s[8:11], 0 offen offset:1280")
    a.label("k4_end")
    a("s_endpgm")
    return kernel_desc(name, 48)
```

```python
import sys
from common import *
import gemm, gemm2
import attn2 as attn
hdr = open('concat_heads__mha_block__compressed_kv_cla__prompt.s.ref').read().split("; Override launch")[0]
a = Asm()
d = []
d.append(gemm2.gen_k1(a))
d.append(attn.gen_attn(a))
d.append(gemm2.gen_k3(a))
d.append(gemm.gen_k4(a))
out = hdr + """; @launch kernel=proj_kernel grid=(448,1,1) block=(512,1,1) lds=131072
; @launch kernel=attn_kernel grid=(512,1,1) block=(256,1,1) lds=65536
; @launch kernel=oproj_kernel grid=(200,1,1) block=(512,1,1) lds=147456
; @launch kernel=reduce_kernel grid=(640,1,1) block=(256,1,1) lds=0
.amdgcn_target "amdgcn-amd-amdhsa--gfx950"
.text
""" + a.text() + '.section .rodata,"a"\n.p2align 6\n' + "".join(".p2align 6\n" + x for x in d)
open(sys.argv[1] if len(sys.argv) > 1 else 'concat_heads__mha_block__compressed_kv_cla__prompt.s', 'w').write(out)
```

```python
from common import *

VRA, VRB, VDA, VL, VMX, VT, QF = 16, 24, 28, 36, 38, 4, 40
RING, NRING, AHEAD = 232, 6, 3

class Cfg: pass
def cfgB():
    c = Cfg(); c.isA = False; c.nt = 8; c.ndt = 4; c.nq = 1
    c.S = [72, 104]; c.NEG = 136; c.P = 152; c.O = 168
    return c
def cfgA():
    c = Cfg(); c.isA = True; c.nt = 2; c.ndt = 1; c.nq = 2
    c.S = [72, 104]; c.NEG = 136; c.P = 168; c.O = 184
    return c

class Seq:
    def __init__(self, a):
        self.a = a; self.items = []; self.ri = 0
    def mfma(self, fkey, readfn, fmt):
        self.items.append(('m', fkey, readfn, fmt))
    def block(self, mf, fillers, tail=None):
        n = len(mf)
        if n == 0:
            for f in fillers: self.items.append(('f', f))
        else:
            for j, m in enumerate(mf):
                for f in fillers[j * len(fillers) // n:(j + 1) * len(fillers) // n]:
                    self.items.append(('f', f))
                self.items.append(('m',) + m)
        if tail: self.items.append(('f', tail))
    def emit(self):
        a = self.a
        keys = []
        for it in self.items:
            if it[0] == 'm' and it[1] not in keys: keys.append(it[1])
        rd = {it[1]: it[2] for it in self.items if it[0] == 'm'}
        regs = {}; cnt = {}; order = []
        issued = 0
        def issue():
            nonlocal issued
            k = keys[issued]; r = RING + 4 * (self.ri % NRING); self.ri += 1
            regs[k] = r; cnt[k] = rd[k](r); order.append(k); issued += 1
        while issued < min(1 + AHEAD, len(keys)): issue()
        for it in self.items:
            if it[0] == 'f':
                a(it[1]); continue
            k = it[1]
            ki = keys.index(k)
            while issued < min(ki + 1 + AHEAD, len(keys)): issue()
            if k in order:
                later = order[order.index(k) + 1:]
                a(f"s_waitcnt lgkmcnt({sum(cnt[x] for x in later)})")
                order = later
            a(it[3].replace("FRAG", vr(regs[k])))
        self.items = []

def qk_mfmas(a, c, par, kb, kstep):
    out = []
    if not c.isA:
        for z in range(2):
            for t in range(8):
                def rdf(r, z=z, t=t):
                    a(f"ds_read_b128 {vr(r)}, v{VRA+t} offset:{kb*16384 + z*8192}"); return 1
                d = c.S[par] + 16 * z
                cin = vr(c.NEG, 16) if t == 0 else vr(d, 16)
                out.append((('k', z, t), rdf, f"v_mfma_f32_32x32x16_bf16 {vr(d,16)}, FRAG, {vr(QF+4*t)}, {cin}"))
    else:
        off = kstep * 32 * 40
        for t in range(2):
            def rdf(r, t=t):
                if t == 0:
                    a(f"ds_read_b64 {vr(r,2)}, v{VRB} offset:{off}\nds_read_b64 {vr(r+2,2)}, v{VRB} offset:{off+8}"); return 2
                a(f"ds_read_b64 {vr(r,2)}, v{VRB+1} offset:{off}\nv_mov_b32 v{r+2}, 0\nv_mov_b32 v{r+3}, 0"); return 1
            for z in range(2):
                d = c.S[par] + 16 * z
                cin = vr(c.NEG + 16 * z, 16) if t == 0 else vr(d, 16)
                out.append((('k', t), rdf, f"v_mfma_f32_32x32x16_bf16 {vr(d,16)}, FRAG, {vr(QF+(2*z+t)*4)}, {cin}"))
    return out

def pv_mfmas(a, c, vb, vstep):
    out = []
    if not c.isA:
        for tt in range(4):
            for dt in range(4):
                def rdf(r, tt=tt, dt=dt):
                    a(f"ds_read_b128 {vr(r)}, v{VRB+tt} offset:{32768 + vb*16384 + dt*4096}"); return 1
                o = c.O + 16 * dt; p = c.P + 4 * tt
                out.append((('v', tt, dt), rdf, f"v_mfma_f32_32x32x16_bf16 {vr(o,16)}, FRAG, {vr(p)}, {vr(o,16)}"))
    else:
        for z in range(2):
            for tt in range(2):
                def rdf(r, tt=tt):
                    a(f"ds_read_b128 {vr(r)}, v{VRA+2*vstep+tt} offset:8192"); return 1
                o = c.O + 16 * z; p = c.P + 8 * z + 4 * tt
                out.append((('v', tt), rdf, f"v_mfma_f32_32x32x16_bf16 {vr(o,16)}, FRAG, {vr(p)}, {vr(o,16)}"))
    return out

def sm_exp(c, par, z):
    b = c.S[par] + 16 * z
    return [f"v_exp_f32 v{b+r}, v{b+r}" for r in range(16)]
def sm_cvt(c, par, z):
    b = c.S[par] + 16 * z
    return [f"v_cvt_pk_bf16_f32 v{c.P+8*z+r}, v{b+2*r}, v{b+2*r+1}" for r in range(8)]
def sm_add(c, par, z):
    if c.isA: return []
    b = c.S[par] + 16 * z
    return [f"v_add_f32 v{VL+(r&1)}, v{VL+(r&1)}, v{b+r}" for r in range(16)]
def sm_mask(c, par):
    out = []
    for z in range(2):
        for r in range(16):
            k = z * 32 + 8 * (r >> 2) + (r & 3); s = c.S[par] + 16 * z + r
            out.append(f"v_cmp_gt_i32 vcc, {k}, v3\ns_nop 1\nv_cndmask_b32 v{s}, v{s}, v2, vcc")
    return out
def sm_max(c, par):
    out = []
    b = c.S[par]
    if not c.isA:
        m0, m1 = VMX, VT
        out += [f"v_max3_f32 v{m0}, v{b}, v{b+1}, v{b+2}", f"v_max3_f32 v{m1}, v{b+3}, v{b+4}, v{b+5}"]
        for i in range(6, 30, 4):
            out += [f"v_max3_f32 v{m0}, v{m0}, v{b+i}, v{b+i+1}", f"v_max3_f32 v{m1}, v{m1}, v{b+i+2}, v{b+i+3}"]
        out += [f"v_max3_f32 v{m0}, v{m0}, v{b+30}, v{b+31}", f"v_max_f32 v{m0}, v{m0}, v{m1}",
                f"v_cmp_lt_f32 vcc, s30, v{m0}"]
    else:
        for i in range(0, 16, 2):
            for z in range(2):
                m = VMX + z; s = b + 16 * z
                if i == 0: out.append(f"v_max_f32 v{m}, v{s}, v{s+1}")
                else: out.append(f"v_max3_f32 v{m}, v{m}, v{s+i}, v{s+i+1}")
        out += [f"v_max_f32 v{VT+2}, v{VMX}, v{VMX+1}", f"v_cmp_lt_f32 vcc, s30, v{VT+2}"]
    return out

def branch_slow(a, slow, par):
    Ls, Lr = a.uniq("slow"), a.uniq("ret")
    slow.append((Ls, Lr, par))
    a(f"s_nop 1\ns_cbranch_vccnz {Ls}")
    a.label(Lr)

def prologue_qk(a, c, sq, slow, masked):
    sq.block(qk_mfmas(a, c, 0, 0, 0), [])
    sq.emit()
    a("s_nop 7\ns_nop 7")
    for f in (sm_mask(c, 0) if masked else []) + sm_max(c, 0): a(f)
    branch_slow(a, slow, 0)

def iteration(a, c, sq, slow, par, kb, kstep, vb, vstep, do_qk, masked, mid=None):
    nx = par ^ 1
    pv = pv_mfmas(a, c, vb, vstep)
    h = len(pv) // 2
    sq.block(qk_mfmas(a, c, nx, kb, kstep) if do_qk else [],
             sm_exp(c, par, 0) + sm_cvt(c, par, 0) + sm_add(c, par, 0), "s_nop 1")
    sq.block(pv[:h], sm_exp(c, par, 1) + sm_cvt(c, par, 1), "s_nop 1")
    f2 = sm_add(c, par, 1)
    if do_qk:
        f2 += (sm_mask(c, nx) if masked else []) + sm_max(c, nx)
    sq.block(pv[h:], f2)
    sq.emit()
    if mid: a(mid)
    if do_qk: branch_slow(a, slow, nx)

def slow_path(a, c, Ls, Lr, par):
    a.label(Ls)
    a("s_nop 7\ns_nop 7")
    for qs in range(c.nq):
        m = VMX + qs
        a(f"""v_mov_b32 v{VT}, v{m}
        v_mov_b32 v{VT+1}, v{m}
        s_nop 1
        v_permlane32_swap_b32 v{VT}, v{VT+1}
        v_max_f32 v{VT}, v{VT}, v{VT+1}
        v_max_f32 v{VT}, s31, v{VT}
        v_max_f32 v{VT+1}, 0, v{VT}
        v_sub_f32 v{VT+1}, 0, v{VT+1}
        v_exp_f32 v{VT+1}, v{VT+1}""")
        for r in range(16):
            a(f"v_sub_f32 v{c.NEG+16*qs+r}, v{c.NEG+16*qs+r}, v{VT}")
        ns = 32 // c.nq
        for r in range(ns):
            a(f"v_sub_f32 v{c.S[par]+ns*qs+r}, v{c.S[par]+ns*qs+r}, v{VT}")
        for r in range(16 * c.ndt):
            a(f"v_mul_f32 v{c.O+16*c.ndt*qs+r}, v{c.O+16*c.ndt*qs+r}, v{VT+1}")
        if not c.isA:
            a(f"v_mul_f32 v{VL}, v{VL}, v{VT+1}\nv_mul_f32 v{VL+1}, v{VL+1}, v{VT+1}")
    a(f"s_mov_b32 s30, 8.0\ns_mov_b32 s31, 0\ns_branch {Lr}")

def rd_addr_256(a):
    a("""v_and_b32 v4, 31, v1
    v_and_b32 v5, 15, v1
    v_xor_b32 v5, v5, v8
    v_lshlrev_b32 v4, 8, v4""")
    for t in range(8):
        a(f"v_xor_b32 v6, {2*t}, v5\nv_lshl_add_u32 v{VRA+t}, v6, 4, v4")

def init_state(a, c):
    for r in range(16 * c.nq): a(f"v_mov_b32 v{c.NEG+r}, 0")
    for r in range(16 * c.ndt * c.nq): a(f"v_mov_b32 v{c.O+r}, 0")
    a(f"""v_mov_b32 v{VL}, 0
    v_mov_b32 v{VL+1}, 0
    s_mov_b32 s30, 0xff7fffff
    s_mov_b32 s31, 0xff7fffff""")

def gen_attn(a):
    name = "attn_kernel"
    kernel_header(a, name)
    a("""s_cmp_ge_u32 s2, 512
    s_cbranch_scc1 at_end
    s_load_dwordx2 s[4:5], s[0:1], 88
    v_and_b32 v1, 63, v0
    v_lshrrev_b32 v2, 6, v0
    v_lshrrev_b32 v8, 5, v1
    v_readfirstlane_b32 s27, v2
    s_and_b32 s20, s2, 31
    s_waitcnt lgkmcnt(0)""")
    srd(a, 8, 4, WS_SIZE)
    a("s_cmp_ge_u32 s2, 256\ns_cbranch_scc1 at_A")
    c = cfgB(); sq = Seq(a)
    rd_addr_256(a)
    a("""v_and_b32 v4, 31, v1
    v_bfe_u32 v5, v1, 1, 3
    v_xor_b32 v5, v5, v8
    v_lshlrev_b32 v4, 7, v4""")
    for tt in range(4):
        a(f"v_xor_b32 v6, {2*tt}, v5\nv_lshl_add_u32 v{VRB+tt}, v6, 4, v4")
    a(f"""v_lshrrev_b32 v4, 4, v1
    v_and_b32 v5, 15, v1
    s_lshl_b32 s36, s20, 8
    s_add_u32 s36, s36, {WS_KB}""")
    for i in range(4):
        a(f"""s_lshl_b32 s37, s27, 4
        s_add_u32 s37, s37, {4*i}
        v_add_u32 v6, s37, v4
        v_and_b32 v7, 15, v6
        v_xor_b32 v7, v7, v5
        v_lshlrev_b32 v6, 13, v6
        v_lshl_add_u32 v6, v7, 4, v6
        v_add_u32 v{VDA+i}, s36, v6""")
    a(f"""v_lshrrev_b32 v4, 3, v1
    v_and_b32 v5, 7, v1
    s_lshl_b32 s36, s20, 19
    s_add_u32 s36, s36, {WS_VTB}""")
    for i in range(4):
        a(f"""s_lshl_b32 s37, s27, 5
        s_add_u32 s37, s37, {8*i}
        v_add_u32 v6, s37, v4
        v_bfe_u32 v7, v6, 1, 3
        v_xor_b32 v7, v7, v5
        v_lshlrev_b32 v6, 12, v6
        v_lshl_add_u32 v6, v7, 4, v6
        v_add_u32 v{VDA+4+i}, s36, v6""")
    a("""s_lshl_b32 s26, s27, 12
    s_lshr_b32 s21, s2, 5
    s_sub_u32 s21, 15, s21
    s_mov_b32 s50, 2
    v_mov_b32 v2, 0xf149f2ca""")
    def loadK(buf):
        for i in range(4):
            a(f"s_add_u32 m0, s26, {buf*16384 + i*1024}\ns_nop 0\nbuffer_load_dwordx4 v{VDA+i}, s[8:11], s23 offen lds")
        a(f"s_add_u32 s23, s23, {64*8192}")
    def loadV(buf):
        for i in range(4):
            a(f"s_add_u32 m0, s26, {32768 + buf*16384 + i*1024}\ns_nop 0\nbuffer_load_dwordx4 v{VDA+4+i}, s[8:11], s24 offen lds")
        a("s_add_u32 s24, s24, 128")
    a.label("atB_outer")
    a(f"""s_mov_b32 s23, 0
    s_mov_b32 s24, 0
    s_barrier""")
    loadK(0)
    a(f"""s_lshl_b32 s22, s21, 7
    s_lshl_b32 s36, s27, 5
    s_add_u32 s22, s22, s36
    v_and_b32 v4, 31, v1
    v_add_u32 v9, s22, v4
    v_lshlrev_b32 v15, 13, v9
    s_lshl_b32 s36, s20, 8
    v_lshl_add_u32 v15, v8, 4, v15
    v_add_u32 v15, s36, v15""")
    for t in range(8):
        a(f"buffer_load_dwordx4 {vr(QF+4*t)}, v15, s[8:11], 0 offen offset:{t*32}")
    loadK(1); loadV(0)
    init_state(a, c)
    a("""v_lshlrev_b32 v3, 2, v8
    v_sub_u32 v3, v9, v3
    s_waitcnt vmcnt(8)
    s_barrier""")
    slow = []
    prologue_qk(a, c, sq, slow, True)
    a("v_subrev_u32 v3, 64, v3\ns_waitcnt vmcnt(0)\ns_barrier\ns_cmp_eq_u32 s21, 0\ns_cbranch_scc1 atB_i0")
    loadK(0); loadV(1)
    a.label("atB_i0")
    iteration(a, c, sq, slow, 0, 1, 0, 0, 0, True, True)
    a("s_cmp_eq_u32 s21, 0\ns_cbranch_scc1 atB_final\ns_mov_b32 s22, s21\ns_cmp_eq_u32 s21, 1\ns_cbranch_scc1 atB_mpair")
    a.label("atB_loop")
    a("s_waitcnt vmcnt(0)\ns_barrier"); loadK(1); loadV(0)
    iteration(a, c, sq, slow, 1, 0, 0, 1, 0, True, False)
    a("s_waitcnt vmcnt(0)\ns_barrier"); loadK(0); loadV(1)
    iteration(a, c, sq, slow, 0, 1, 0, 0, 0, True, False)
    a("s_sub_u32 s22, s22, 1\ns_cmp_lg_u32 s22, 1\ns_cbranch_scc1 atB_loop")
    a.label("atB_mpair")
    a("""s_lshl_b32 s36, s21, 7
    v_lshlrev_b32 v3, 2, v8
    v_sub_u32 v3, v9, v3
    v_subrev_u32 v3, s36, v3
    s_waitcnt vmcnt(0)
    s_barrier""")
    loadK(1); loadV(0)
    iteration(a, c, sq, slow, 1, 0, 0, 1, 0, True, True)
    a("v_subrev_u32 v3, 64, v3\ns_waitcnt vmcnt(0)\ns_barrier"); loadV(1)
    iteration(a, c, sq, slow, 0, 1, 0, 0, 0, True, True)
    a.label("atB_final")
    a("s_cmp_lg_u32 s21, 0\ns_cbranch_scc1 atB_f2")
    loadV(1)
    a.label("atB_f2")
    a("s_waitcnt vmcnt(0)\ns_barrier")
    iteration(a, c, sq, slow, 1, 0, 0, 1, 0, False, False)
    a(f"""v_add_f32 v{VL}, v{VL}, v{VL+1}
    v_mov_b32 v{VL+1}, v{VL}
    s_nop 1
    v_permlane32_swap_b32 v{VL}, v{VL+1}
    v_add_f32 v{VL}, v{VL}, v{VL+1}
    v_rcp_f32 v{VL}, v{VL}
    v_add_u32 v15, {WS_CTX - WS_QB}, v15
    s_nop 7""")
    k = 0
    for dt in range(4):
        for t in range(2):
            T = 72 + 4 * (k & 3); k += 1
            o = c.O + dt * 16 + 8 * t
            for r in range(8): a(f"v_mul_f32 v{o+r}, v{o+r}, v{VL}")
            for r in range(4): a(f"v_cvt_pk_bf16_f32 v{T+r}, v{o+2*r}, v{o+2*r+1}")
            a(f"buffer_store_dwordx4 {vr(T)}, v15, s[8:11], 0 offen offset:{dt*64+t*32}")
    a("""s_sub_u32 s21, 15, s21
    s_sub_u32 s50, s50, 1
    s_cmp_lg_u32 s50, 0
    s_cbranch_scc1 atB_outer
    s_endpgm""")
    for Ls, Lr, par in slow: slow_path(a, c, Ls, Lr, par)
    a.label("at_A")
    c = cfgA(); sq = Seq(a)
    a(f"""s_sub_u32 s21, s2, 256
    s_lshr_b32 s21, s21, 5
    s_lshl_b32 s22, s21, 8
    s_lshl_b32 s36, s27, 6
    s_add_u32 s22, s22, s36
    v_and_b32 v4, 31, v1
    v_add_u32 v9, s22, v4
    s_lshl_b32 s36, s20, 11
    v_add_u32 v5, s36, v9
    v_mul_u32_u24 v5, 40, v5
    v_add_u32 v5, {WS_QA}, v5
    v_lshl_add_u32 v6, v8, 4, v5
    v_cmp_eq_u32 vcc, 0, v8""")
    for qs in range(2):
        q = QF + qs * 8
        a(f"""buffer_load_dwordx2 {vr(q,2)}, v6, s[8:11], 0 offen offset:{qs*1280}
        buffer_load_dwordx2 {vr(q+2,2)}, v6, s[8:11], 0 offen offset:{qs*1280+8}
        buffer_load_dwordx2 {vr(q+4,2)}, v5, s[8:11], 0 offen offset:{qs*1280+32}
        v_mov_b32 v{q+6}, 0
        v_mov_b32 v{q+7}, 0""")
    a("s_waitcnt vmcnt(0)")
    for qs in range(2):
        q = QF + qs * 8
        a(f"v_cndmask_b32 v{q+4}, 0, v{q+4}, vcc\nv_cndmask_b32 v{q+5}, 0, v{q+5}, vcc")
    rd_addr_256(a)
    a(f"""v_and_b32 v4, 31, v1
    v_mul_u32_u24 v4, 40, v4
    v_lshl_add_u32 v{VRB}, v8, 4, v4
    v_add_u32 v{VRB+1}, 32, v4
    v_lshlrev_b32 v4, 2, v1
    v_mov_b32 v5, 0x3f803f80""")
    for b in range(4):
        a(f"ds_write_b32 v4, v5 offset:{b*16384 + 8192 + 20*256}")
    for i in range(3):
        Lv, Ld = a.uniq("slv"), a.uniq("sld")
        a(f"""s_mul_i32 s36, s27, 3
        s_add_u32 s36, s36, {i}
        s_cmp_ge_u32 s36, 10
        s_cselect_b32 s37, 10, 0
        s_sub_u32 s36, s36, s37
        s_mov_b32 s{40+i}, 0
        s_cmp_ge_u32 s36, 5
        s_cbranch_scc1 {Lv}
        s_lshl_b32 s{46+i}, s36, 10
        s_mov_b32 s{43+i}, 5120
        s_mul_i32 s37, s20, 81920
        s_add_u32 s37, s37, s{46+i}
        s_add_u32 s37, s37, {WS_KA}
        v_lshl_add_u32 v{VDA+i}, v1, 4, s37
        s_branch {Ld}""")
        a.label(Lv)
        a(f"""s_sub_u32 s36, s36, 5
        s_lshl_b32 s{46+i}, s36, 10
        s_add_u32 s{46+i}, s{46+i}, 8192
        s_mov_b32 s{43+i}, 256
        s_lshl_b32 s36, s36, 2
        v_lshrrev_b32 v4, 4, v1
        v_add_u32 v4, s36, v4
        v_and_b32 v5, 15, v4
        v_and_b32 v6, 15, v1
        v_xor_b32 v5, v5, v6
        s_mul_i32 s37, s20, 20
        v_add_u32 v4, s37, v4
        v_lshlrev_b32 v4, 12, v4
        v_lshl_add_u32 v4, v5, 4, v4
        v_add_u32 v{VDA+i}, {WS_VTA}, v4""")
        a.label(Ld)
    init_state(a, c)
    def loadsA():
        for i in range(3):
            a(f"""s_add_u32 m0, s{46+i}, s49
            s_nop 0
            buffer_load_dwordx4 v{VDA+i}, s[8:11], s{40+i} offen lds
            s_add_u32 s{40+i}, s{40+i}, s{43+i}""")
        a("s_add_u32 s49, s49, 16384\ns_and_b32 s49, s49, 0xffff")
    def bump(regs):
        return "\n".join(f"v_add_u32 v{r}, 0x4000, v{r}\nv_and_b32 v{r}, 0xffff, v{r}" for r in regs)
    a("s_mov_b32 s49, 0")
    loadsA(); loadsA()
    slow = []
    a("s_mov_b32 s21, 15\ns_waitcnt vmcnt(3) lgkmcnt(0)\ns_barrier")
    prologue_qk(a, c, sq, slow, False)
    kb = [VRB, VRB + 1]; vbs = list(range(VRA, VRA + 8))
    a.label("atA_loop")
    for st in range(3):
        iteration(a, c, sq, slow, st & 1, 0, st + 1, 0, st, True, False)
    a("s_waitcnt vmcnt(0)\ns_barrier\ns_cmp_eq_u32 s21, 1\ns_cbranch_scc1 atA_nold")
    loadsA()
    a.label("atA_nold")
    a(bump(kb))
    iteration(a, c, sq, slow, 1, 0, 0, 0, 3, True, False, mid=bump(vbs))
    a("s_sub_u32 s21, s21, 1\ns_cmp_lg_u32 s21, 0\ns_cbranch_scc1 atA_loop")
    for st in range(3):
        iteration(a, c, sq, slow, st & 1, 0, st + 1, 0, st, True, False)
    iteration(a, c, sq, slow, 1, 0, 0, 0, 3, False, False)
    a(f"""s_nop 7
    s_nop 7
    v_mul_u32_u24 v5, 1280, v9
    s_mul_i32 s36, s20, 40
    s_add_u32 s36, s36, {WS_OA}
    v_lshl_add_u32 v5, v8, 3, v5
    v_add_u32 v5, s36, v5""")
    for qs in range(2):
        o = c.O + qs * 16
        a(f"""v_mov_b32 v6, v{o+8}
        v_mov_b32 v7, v{o+8}
        s_nop 1
        v_permlane32_swap_b32 v6, v7
        v_rcp_f32 v7, v7
        s_nop 0""")
        for r in range(12): a(f"v_mul_f32 v{o+r}, v{o+r}, v7")
        for j in range(3):
            T = 72 + 2 * (qs * 3 + j)
            a(f"v_cvt_pk_bf16_f32 v{T}, v{o+4*j}, v{o+4*j+1}\nv_cvt_pk_bf16_f32 v{T+1}, v{o+4*j+2}, v{o+4*j+3}")
            if j == 2: a("s_mov_b32 exec_hi, 0")
            a(f"buffer_store_dwordx2 {vr(T,2)}, v5, s[8:11], 0 offen offset:{j*16}")
            if j == 2: a("s_mov_b32 exec_hi, -1")
        if qs == 0: a(f"v_add_u32 v5, {32*1280}, v5")
    a("s_endpgm")
    for Ls, Lr, par in slow: slow_path(a, c, Ls, Lr, par)
    a.label("at_end")
    a("s_endpgm")
    return kernel_desc(name, 256)
```

```python
from common import *
import os

VRA, VRB, VDA, VL, VMX, VT, QF = 16, 24, 28, 36, 38, 4, 40
RING, NRING, AHEAD = 232, 6, int(os.environ.get('AHEAD', '3'))

class Cfg: pass
def cfgB():
    c = Cfg(); c.isA = False; c.nt = 8; c.ndt = 4; c.nq = 1
    c.S = [72, 104]; c.NEG = 136; c.P = 152; c.O = 168
    return c
def cfgA():
    c = Cfg(); c.isA = True; c.nt = 2; c.ndt = 1; c.nq = 2
    c.S = [72, 104]; c.NEG = 136; c.P = 168; c.O = 184
    return c

class Seq:
    def __init__(self, a):
        self.a = a; self.items = []; self.ri = 0
    def mfma(self, fkey, readfn, fmt):
        self.items.append(('m', fkey, readfn, fmt))
    def block(self, mf, fillers, tail=None):
        n = len(mf)
        if n == 0:
            for f in fillers: self.items.append(('f', f))
        else:
            for j, m in enumerate(mf):
                for f in fillers[j * len(fillers) // n:(j + 1) * len(fillers) // n]:
                    self.items.append(('f', f))
                self.items.append(('m',) + m)
        if tail: self.items.append(('f', tail))
    def emit(self):
        a = self.a
        keys = []
        for it in self.items:
            if it[0] == 'm' and it[1] not in keys: keys.append(it[1])
        rd = {it[1]: it[2] for it in self.items if it[0] == 'm'}
        regs = {}; cnt = {}; order = []
        issued = 0
        def issue():
            nonlocal issued
            k = keys[issued]; r = RING + 4 * (self.ri % NRING); self.ri += 1
            regs[k] = r; cnt[k] = rd[k](r); order.append(k); issued += 1
        while issued < min(1 + AHEAD, len(keys)): issue()
        for it in self.items:
            if it[0] == 'f':
                a(it[1]); continue
            k = it[1]
            ki = keys.index(k)
            while issued < min(ki + 1 + AHEAD, len(keys)): issue()
            if k in order:
                later = order[order.index(k) + 1:]
                a(f"s_waitcnt lgkmcnt({sum(cnt[x] for x in later)})")
                order = later
            a(it[3].replace("FRAG", vr(regs[k])))
        self.items = []

def qk_mfmas(a, c, par, kb, kstep):
    out = []
    if not c.isA:
        for z in range(2):
            for t in range(8):
                def rdf(r, z=z, t=t):
                    a(f"ds_read_b128 {vr(r)}, v{VRA+t} offset:{kb*16384 + z*8192}"); return 1
                d = c.S[par] + 16 * z
                cin = vr(c.NEG, 16) if t == 0 else vr(d, 16)
                out.append((('k', z, t), rdf, f"v_mfma_f32_32x32x16_bf16 {vr(d,16)}, FRAG, {vr(QF+4*t)}, {cin}"))
    else:
        off = kstep * 32 * 40
        for t in range(2):
            def rdf(r, t=t):
                if t == 0:
                    a(f"ds_read_b64 {vr(r,2)}, v{VRB} offset:{off}\nds_read_b64 {vr(r+2,2)}, v{VRB} offset:{off+8}"); return 2
                a(f"ds_read_b64 {vr(r,2)}, v{VRB+1} offset:{off}\nv_mov_b32 v{r+2}, 0\nv_mov_b32 v{r+3}, 0"); return 1
            for z in range(2):
                d = c.S[par] + 16 * z
                cin = vr(c.NEG + 16 * z, 16) if t == 0 else vr(d, 16)
                out.append((('k', t), rdf, f"v_mfma_f32_32x32x16_bf16 {vr(d,16)}, FRAG, {vr(QF+(2*z+t)*4)}, {cin}"))
    return out

def pv_mfmas(a, c, vb, vstep):
    out = []
    if not c.isA:
        for tt in range(4):
            for dt in range(4):
                def rdf(r, tt=tt, dt=dt):
                    a(f"ds_read_b128 {vr(r)}, v{VRB+tt} offset:{32768 + vb*16384 + dt*4096}"); return 1
                o = c.O + 16 * dt; p = c.P + 4 * tt
                out.append((('v', tt, dt), rdf, f"v_mfma_f32_32x32x16_bf16 {vr(o,16)}, FRAG, {vr(p)}, {vr(o,16)}"))
    else:
        for z in range(2):
            for tt in range(2):
                def rdf(r, tt=tt):
                    a(f"ds_read_b128 {vr(r)}, v{VRA+2*vstep+tt} offset:8192"); return 1
                o = c.O + 16 * z; p = c.P + 8 * z + 4 * tt
                out.append((('v', tt), rdf, f"v_mfma_f32_32x32x16_bf16 {vr(o,16)}, FRAG, {vr(p)}, {vr(o,16)}"))
    return out

def sm_exp(c, par, z):
    b = c.S[par] + 16 * z
    return [f"v_exp_f32 v{b+r}, v{b+r}" for r in range(16)]
def sm_cvt(c, par, z):
    b = c.S[par] + 16 * z
    return [f"v_cvt_pk_bf16_f32 v{c.P+8*z+r}, v{b+2*r}, v{b+2*r+1}" for r in range(8)]
def sm_add(c, par, z):
    if c.isA: return []
    b = c.S[par] + 16 * z
    return [f"v_add_f32 v{VL+(r&1)}, v{VL+(r&1)}, v{b+r}" for r in range(16)]
def sm_mask(c, par):
    out = []
    for z in range(2):
        for r in range(16):
            k = z * 32 + 8 * (r >> 2) + (r & 3); s = c.S[par] + 16 * z + r
            out.append(f"v_cmp_gt_i32 vcc, {k}, v3\ns_nop 1\nv_cndmask_b32 v{s}, v{s}, v2, vcc")
    return out
def sm_max(c, par):
    out = []
    b = c.S[par]
    if not c.isA:
        m0, m1 = VMX, VT
        out += [f"v_max3_f32 v{m0}, v{b}, v{b+1}, v{b+2}", f"v_max3_f32 v{m1}, v{b+3}, v{b+4}, v{b+5}"]
        for i in range(6, 30, 4):
            out += [f"v_max3_f32 v{m0}, v{m0}, v{b+i}, v{b+i+1}", f"v_max3_f32 v{m1}, v{m1}, v{b+i+2}, v{b+i+3}"]
        out += [f"v_max3_f32 v{m0}, v{m0}, v{b+30}, v{b+31}", f"v_max_f32 v{m0}, v{m0}, v{m1}",
                f"v_cmp_lt_f32 vcc, s30, v{m0}"]
    else:
        for i in range(0, 16, 2):
            for z in range(2):
                m = VMX + z; s = b + 16 * z
                if i == 0: out.append(f"v_max_f32 v{m}, v{s}, v{s+1}")
                else: out.append(f"v_max3_f32 v{m}, v{m}, v{s+i}, v{s+i+1}")
        out += [f"v_max_f32 v{VT+2}, v{VMX}, v{VMX+1}", f"v_cmp_lt_f32 vcc, s30, v{VT+2}"]
    return out

def branch_slow(a, slow, par):
    Ls, Lr = a.uniq("slow"), a.uniq("ret")
    slow.append((Ls, Lr, par))
    a(f"s_nop 1\ns_cbranch_vccnz {Ls}")
    a.label(Lr)

def prologue_qk(a, c, sq, slow, masked):
    sq.block(qk_mfmas(a, c, 0, 0, 0), [])
    sq.emit()
    a("s_nop 7\ns_nop 7")
    for f in (sm_mask(c, 0) if masked else []) + sm_max(c, 0): a(f)
    branch_slow(a, slow, 0)

def iteration(a, c, sq, slow, par, kb, kstep, vb, vstep, do_qk, masked, mid=None):
    nx = par ^ 1
    pv = pv_mfmas(a, c, vb, vstep)
    h = len(pv) // 2
    sq.block(qk_mfmas(a, c, nx, kb, kstep) if do_qk else [],
             sm_exp(c, par, 0) + sm_cvt(c, par, 0) + sm_add(c, par, 0), "s_nop 1")
    sq.block(pv[:h], sm_exp(c, par, 1) + sm_cvt(c, par, 1), "s_nop 1")
    f2 = sm_add(c, par, 1)
    if do_qk:
        f2 += (sm_mask(c, nx) if masked else []) + sm_max(c, nx)
    sq.block(pv[h:], f2)
    sq.emit()
    if mid: a(mid)
    if do_qk: branch_slow(a, slow, nx)

def slow_path(a, c, Ls, Lr, par):
    a.label(Ls)
    a("s_nop 7\ns_nop 7")
    for qs in range(c.nq):
        m = VMX + qs
        a(f"""v_mov_b32 v{VT}, v{m}
        v_mov_b32 v{VT+1}, v{m}
        s_nop 1
        v_permlane32_swap_b32 v{VT}, v{VT+1}
        v_max_f32 v{VT}, v{VT}, v{VT+1}
        v_max_f32 v{VT}, s31, v{VT}
        v_max_f32 v{VT+1}, 0, v{VT}
        v_sub_f32 v{VT+1}, 0, v{VT+1}
        v_exp_f32 v{VT+1}, v{VT+1}""")
        for r in range(16):
            a(f"v_sub_f32 v{c.NEG+16*qs+r}, v{c.NEG+16*qs+r}, v{VT}")
        ns = 32 // c.nq
        for r in range(ns):
            a(f"v_sub_f32 v{c.S[par]+ns*qs+r}, v{c.S[par]+ns*qs+r}, v{VT}")
        for r in range(16 * c.ndt):
            a(f"v_mul_f32 v{c.O+16*c.ndt*qs+r}, v{c.O+16*c.ndt*qs+r}, v{VT+1}")
        if not c.isA:
            a(f"v_mul_f32 v{VL}, v{VL}, v{VT+1}\nv_mul_f32 v{VL+1}, v{VL+1}, v{VT+1}")
    a(f"s_mov_b32 s30, 8.0\ns_mov_b32 s31, 0\ns_branch {Lr}")

def rd_addr_256(a):
    a("""v_and_b32 v4, 31, v1
    v_and_b32 v5, 15, v1
    v_xor_b32 v5, v5, v8
    v_lshlrev_b32 v4, 8, v4""")
    for t in range(8):
        a(f"v_xor_b32 v6, {2*t}, v5\nv_lshl_add_u32 v{VRA+t}, v6, 4, v4")

def init_state(a, c):
    for r in range(16 * c.nq): a(f"v_mov_b32 v{c.NEG+r}, 0")
    for r in range(16 * c.ndt * c.nq): a(f"v_mov_b32 v{c.O+r}, 0")
    a(f"""v_mov_b32 v{VL}, 0
    v_mov_b32 v{VL+1}, 0
    s_mov_b32 s30, 0xff7fffff
    s_mov_b32 s31, 0xff7fffff""")

def gen_attn(a):
    name = "attn_kernel"
    kernel_header(a, name)
    a("""s_cmp_ge_u32 s2, 512
    s_cbranch_scc1 at_end
    s_load_dwordx2 s[4:5], s[0:1], 88
    v_and_b32 v1, 63, v0
    v_lshrrev_b32 v2, 6, v0
    v_lshrrev_b32 v8, 5, v1
    v_readfirstlane_b32 s27, v2
    s_and_b32 s20, s2, 31
    s_waitcnt lgkmcnt(0)""")
    srd(a, 8, 4, WS_SIZE)
    a("s_cmp_ge_u32 s2, 256\ns_cbranch_scc1 at_A")
    c = cfgB(); sq = Seq(a)
    if os.environ.get('SKIP_B'): a("s_endpgm")
    rd_addr_256(a)
    a("""v_and_b32 v4, 31, v1
    v_bfe_u32 v5, v1, 1, 3
    v_xor_b32 v5, v5, v8
    v_lshlrev_b32 v4, 7, v4""")
    for tt in range(4):
        a(f"v_xor_b32 v6, {2*tt}, v5\nv_lshl_add_u32 v{VRB+tt}, v6, 4, v4")
    a(f"""v_lshrrev_b32 v4, 4, v1
    v_and_b32 v5, 15, v1
    s_lshl_b32 s36, s20, 8
    s_add_u32 s36, s36, {WS_KB}""")
    for i in range(4):
        a(f"""s_lshl_b32 s37, s27, 4
        s_add_u32 s37, s37, {4*i}
        v_add_u32 v6, s37, v4
        v_and_b32 v7, 15, v6
        v_xor_b32 v7, v7, v5
        v_lshlrev_b32 v6, 13, v6
        v_lshl_add_u32 v6, v7, 4, v6
        v_add_u32 v{VDA+i}, s36, v6""")
    a(f"""v_lshrrev_b32 v4, 3, v1
    v_and_b32 v5, 7, v1
    s_lshl_b32 s36, s20, 19
    s_add_u32 s36, s36, {WS_VTB}""")
    for i in range(4):
        a(f"""s_lshl_b32 s37, s27, 5
        s_add_u32 s37, s37, {8*i}
        v_add_u32 v6, s37, v4
        v_bfe_u32 v7, v6, 1, 3
        v_xor_b32 v7, v7, v5
        v_lshlrev_b32 v6, 12, v6
        v_lshl_add_u32 v6, v7, 4, v6
        v_add_u32 v{VDA+4+i}, s36, v6""")
    a("""s_lshl_b32 s26, s27, 12
    s_lshr_b32 s21, s2, 5
    s_sub_u32 s21, 15, s21
    s_mov_b32 s50, 2
    v_mov_b32 v2, 0xf149f2ca""")
    def loadK(buf):
        for i in range(4):
            a(f"s_add_u32 m0, s26, {buf*16384 + i*1024}\ns_nop 0\nbuffer_load_dwordx4 v{VDA+i}, s[8:11], s23 offen lds")
        a(f"s_add_u32 s23, s23, {64*8192}")
    def loadV(buf):
        for i in range(4):
            a(f"s_add_u32 m0, s26, {32768 + buf*16384 + i*1024}\ns_nop 0\nbuffer_load_dwordx4 v{VDA+4+i}, s[8:11], s24 offen lds")
        a("s_add_u32 s24, s24, 128")
    def pf():
        a("buffer_load_dword v12, v10, s[8:11], 0 offen\nv_add_u32 v10, v11, v10")
    a.label("atB_outer")
    a(f"""s_mov_b32 s23, 0
    s_mov_b32 s24, 0
    s_barrier""")
    loadK(0)
    a(f"""s_lshl_b32 s22, s21, 7
    s_lshl_b32 s36, s27, 5
    s_add_u32 s22, s22, s36
    v_and_b32 v4, 31, v1
    v_add_u32 v9, s22, v4
    v_lshlrev_b32 v15, 13, v9
    s_lshl_b32 s36, s20, 8
    v_lshl_add_u32 v15, v8, 4, v15
    v_add_u32 v15, s36, v15""")
    for t in range(8):
        a(f"buffer_load_dwordx4 {vr(QF+4*t)}, v15, s[8:11], 0 offen offset:{t*32}")
    loadK(1); loadV(0)
    a(f"""v_and_b32 v4, 31, v1
    s_lshl_b32 s36, s27, 5
    v_add_u32 v4, s36, v4
    v_lshrrev_b32 v5, 1, v4
    v_lshlrev_b32 v5, 13, v5
    v_and_b32 v6, 1, v4
    v_lshl_add_u32 v5, v6, 7, v5
    s_lshl_b32 s36, s20, 8
    s_add_u32 s36, s36, {WS_KB + 2*64*8192}
    v_add_u32 v5, s36, v5
    v_lshlrev_b32 v4, 12, v4
    s_lshl_b32 s36, s20, 19
    s_add_u32 s36, s36, {WS_VTB + 128}
    v_add_u32 v4, s36, v4
    v_cmp_eq_u32 vcc, 0, v8
    v_mov_b32 v6, 128
    v_mov_b32 v7, {64*8192}
    v_cndmask_b32 v10, v4, v5, vcc
    v_cndmask_b32 v11, v6, v7, vcc""")
    pf(); pf()
    init_state(a, c)
    a("""v_lshlrev_b32 v3, 2, v8
    v_sub_u32 v3, v9, v3
    s_waitcnt vmcnt(10)
    s_barrier""")
    slow = []
    prologue_qk(a, c, sq, slow, True)
    a("v_subrev_u32 v3, 64, v3\ns_waitcnt vmcnt(2)\ns_barrier\ns_cmp_eq_u32 s21, 0\ns_cbranch_scc1 atB_i0")
    loadK(0); loadV(1)
    a.label("atB_i0")
    pf()
    iteration(a, c, sq, slow, 0, 1, 0, 0, 0, True, True)
    a("s_cmp_eq_u32 s21, 0\ns_cbranch_scc1 atB_final\ns_mov_b32 s22, s21\ns_cmp_eq_u32 s21, 1\ns_cbranch_scc1 atB_mpair")
    a.label("atB_loop")
    a("s_waitcnt vmcnt(1)\ns_barrier"); loadK(1); loadV(0); pf()
    iteration(a, c, sq, slow, 1, 0, 0, 1, 0, True, False)
    a("s_waitcnt vmcnt(1)\ns_barrier"); loadK(0); loadV(1); pf()
    iteration(a, c, sq, slow, 0, 1, 0, 0, 0, True, False)
    a("s_sub_u32 s22, s22, 1\ns_cmp_lg_u32 s22, 1\ns_cbranch_scc1 atB_loop")
    a.label("atB_mpair")
    a("""s_lshl_b32 s36, s21, 7
    v_lshlrev_b32 v3, 2, v8
    v_sub_u32 v3, v9, v3
    v_subrev_u32 v3, s36, v3
    s_waitcnt vmcnt(1)
    s_barrier""")
    loadK(1); loadV(0)
    iteration(a, c, sq, slow, 1, 0, 0, 1, 0, True, True)
    a("v_subrev_u32 v3, 64, v3\ns_waitcnt vmcnt(0)\ns_barrier"); loadV(1)
    iteration(a, c, sq, slow, 0, 1, 0, 0, 0, True, True)
    a.label("atB_final")
    a("s_cmp_lg_u32 s21, 0\ns_cbranch_scc1 atB_f2")
    loadV(1)
    a.label("atB_f2")
    a("s_waitcnt vmcnt(0)\ns_barrier")
    iteration(a, c, sq, slow, 1, 0, 0, 1, 0, False, False)
    a(f"""v_add_f32 v{VL}, v{VL}, v{VL+1}
    v_mov_b32 v{VL+1}, v{VL}
    s_nop 1
    v_permlane32_swap_b32 v{VL}, v{VL+1}
    v_add_f32 v{VL}, v{VL}, v{VL+1}
    v_rcp_f32 v{VL}, v{VL}
    v_add_u32 v15, {WS_CTX - WS_QB}, v15
    s_nop 7""")
    k = 0
    for dt in range(4):
        for t in range(2):
            T = 72 + 4 * (k & 3); k += 1
            o = c.O + dt * 16 + 8 * t
            for r in range(8): a(f"v_mul_f32 v{o+r}, v{o+r}, v{VL}")
            for r in range(4): a(f"v_cvt_pk_bf16_f32 v{T+r}, v{o+2*r}, v{o+2*r+1}")
            a(f"buffer_store_dwordx4 {vr(T)}, v15, s[8:11], 0 offen offset:{dt*64+t*32}")
    a("""s_sub_u32 s21, 15, s21
    s_sub_u32 s50, s50, 1
    s_cmp_lg_u32 s50, 0
    s_cbranch_scc1 atB_outer
    s_endpgm""")
    for Ls, Lr, par in slow: slow_path(a, c, Ls, Lr, par)
    a.label("at_A")
    c = cfgA(); sq = Seq(a)
    a(f"""s_sub_u32 s21, s2, 256
    s_lshr_b32 s21, s21, 5
    s_lshl_b32 s22, s21, 8
    s_lshl_b32 s36, s27, 6
    s_add_u32 s22, s22, s36
    v_and_b32 v4, 31, v1
    v_add_u32 v9, s22, v4
    s_lshl_b32 s36, s20, 11
    v_add_u32 v5, s36, v9
    v_mul_u32_u24 v5, 40, v5
    v_add_u32 v5, {WS_QA}, v5
    v_lshl_add_u32 v6, v8, 4, v5
    v_cmp_eq_u32 vcc, 0, v8""")
    for qs in range(2):
        q = QF + qs * 8
        a(f"""buffer_load_dwordx2 {vr(q,2)}, v6, s[8:11], 0 offen offset:{qs*1280}
        buffer_load_dwordx2 {vr(q+2,2)}, v6, s[8:11], 0 offen offset:{qs*1280+8}
        buffer_load_dwordx2 {vr(q+4,2)}, v5, s[8:11], 0 offen offset:{qs*1280+32}
        v_mov_b32 v{q+6}, 0
        v_mov_b32 v{q+7}, 0""")
    a("s_waitcnt vmcnt(0)")
    for qs in range(2):
        q = QF + qs * 8
        a(f"v_cndmask_b32 v{q+4}, 0, v{q+4}, vcc\nv_cndmask_b32 v{q+5}, 0, v{q+5}, vcc")
    rd_addr_256(a)
    a(f"""v_and_b32 v4, 31, v1
    v_mul_u32_u24 v4, 40, v4
    v_lshl_add_u32 v{VRB}, v8, 4, v4
    v_add_u32 v{VRB+1}, 32, v4
    v_lshlrev_b32 v4, 2, v1
    v_mov_b32 v5, 0x3f803f80""")
    for b in range(4):
        a(f"ds_write_b32 v4, v5 offset:{b*16384 + 8192 + 20*256}")
    for i in range(3):
        Lv, Ld = a.uniq("slv"), a.uniq("sld")
        a(f"""s_mul_i32 s36, s27, 3
        s_add_u32 s36, s36, {i}
        s_cmp_ge_u32 s36, 10
        s_cselect_b32 s37, 10, 0
        s_sub_u32 s36, s36, s37
        s_mov_b32 s{40+i}, 0
        s_cmp_ge_u32 s36, 5
        s_cbranch_scc1 {Lv}
        s_lshl_b32 s{46+i}, s36, 10
        s_mov_b32 s{43+i}, 5120
        s_mul_i32 s37, s20, 81920
        s_add_u32 s37, s37, s{46+i}
        s_add_u32 s37, s37, {WS_KA}
        v_lshl_add_u32 v{VDA+i}, v1, 4, s37
        s_branch {Ld}""")
        a.label(Lv)
        a(f"""s_sub_u32 s36, s36, 5
        s_lshl_b32 s{46+i}, s36, 10
        s_add_u32 s{46+i}, s{46+i}, 8192
        s_mov_b32 s{43+i}, 256
        s_lshl_b32 s36, s36, 2
        v_lshrrev_b32 v4, 4, v1
        v_add_u32 v4, s36, v4
        v_and_b32 v5, 15, v4
        v_and_b32 v6, 15, v1
        v_xor_b32 v5, v5, v6
        s_mul_i32 s37, s20, 20
        v_add_u32 v4, s37, v4
        v_lshlrev_b32 v4, 12, v4
        v_lshl_add_u32 v4, v5, 4, v4
        v_add_u32 v{VDA+i}, {WS_VTA}, v4""")
        a.label(Ld)
    init_state(a, c)
    def loadsA():
        for i in range(3):
            a(f"""s_add_u32 m0, s{46+i}, s49
            s_nop 0
            buffer_load_dwordx4 v{VDA+i}, s[8:11], s{40+i} offen lds
            s_add_u32 s{40+i}, s{40+i}, s{43+i}""")
        a("s_add_u32 s49, s49, 16384\ns_and_b32 s49, s49, 0xffff")
    def bump(regs):
        return "\n".join(f"v_add_u32 v{r}, 0x4000, v{r}\nv_and_b32 v{r}, 0xffff, v{r}" for r in regs)
    a("s_mov_b32 s49, 0")
    loadsA(); loadsA()
    slow = []
    a("s_mov_b32 s21, 15\ns_waitcnt vmcnt(3) lgkmcnt(0)\ns_barrier")
    prologue_qk(a, c, sq, slow, False)
    kb = [VRB, VRB + 1]; vbs = list(range(VRA, VRA + 8))
    a.label("atA_loop")
    for st in range(3):
        iteration(a, c, sq, slow, st & 1, 0, st + 1, 0, st, True, False)
    a("s_waitcnt vmcnt(0)\ns_barrier\ns_cmp_eq_u32 s21, 1\ns_cbranch_scc1 atA_nold")
    loadsA()
    a.label("atA_nold")
    a(bump(kb))
    iteration(a, c, sq, slow, 1, 0, 0, 0, 3, True, False, mid=bump(vbs))
    a("s_sub_u32 s21, s21, 1\ns_cmp_lg_u32 s21, 0\ns_cbranch_scc1 atA_loop")
    for st in range(3):
        iteration(a, c, sq, slow, st & 1, 0, st + 1, 0, st, True, False)
    iteration(a, c, sq, slow, 1, 0, 0, 0, 3, False, False)
    a(f"""s_nop 7
    s_nop 7
    v_mul_u32_u24 v5, 1280, v9
    s_mul_i32 s36, s20, 40
    s_add_u32 s36, s36, {WS_OA}
    v_lshl_add_u32 v5, v8, 3, v5
    v_add_u32 v5, s36, v5""")
    for qs in range(2):
        o = c.O + qs * 16
        a(f"""v_mov_b32 v6, v{o+8}
        v_mov_b32 v7, v{o+8}
        s_nop 1
        v_permlane32_swap_b32 v6, v7
        v_rcp_f32 v7, v7
        s_nop 0""")
        for r in range(12): a(f"v_mul_f32 v{o+r}, v{o+r}, v7")
        for j in range(3):
            T = 72 + 2 * (qs * 3 + j)
            a(f"v_cvt_pk_bf16_f32 v{T}, v{o+4*j}, v{o+4*j+1}\nv_cvt_pk_bf16_f32 v{T+1}, v{o+4*j+2}, v{o+4*j+3}")
            if j == 2: a("s_mov_b32 exec_hi, 0")
            a(f"buffer_store_dwordx2 {vr(T,2)}, v5, s[8:11], 0 offen offset:{j*16}")
            if j == 2: a("s_mov_b32 exec_hi, -1")
        if qs == 0: a(f"v_add_u32 v5, {32*1280}, v5")
    a("s_endpgm")
    for Ls, Lr, par in slow: slow_path(a, c, Ls, Lr, par)
    a.label("at_end")
    a("s_endpgm")
    return kernel_desc(name, 256)
```

```python
from common import *
import os

VXG, VWG, VXR, VWR = 10, 14, 18, 22
FR = 64
ACC = 128

def acc(i, j):
    return ACC + (i * 2 + j) * 16

def issue_loads(a, buf):
    for i in range(4):
        a(f"""s_add_u32 m0, s26, {buf*32768 + i*1024}
        s_nop 0
        buffer_load_dwordx4 v{VXG+i}, s[8:11], s23 offen lds""")
    for i in range(4):
        a(f"""s_add_u32 m0, s26, {buf*32768 + 16384 + i*1024}
        s_nop 0
        buffer_load_dwordx4 v{VWG+i}, s[12:15], s24 offen lds""")
    a("""s_add_u32 s23, s23, 128
    s_add_u32 s24, s24, s25""")

def read_frags(a, buf, kk, st, perm=False):
    b = FR + 16 * st
    for mi in range(2):
        a(f"ds_read_b128 {vr(b+4*mi)}, v{VXR+kk} offset:{buf*32768 + mi*4096}")
    for ni in range(2):
        for u in range(2):
            a(f"ds_read_b64_tr_b16 {vr(b+8+4*ni+2*u,2)}, v{VWR+ni} offset:{buf*32768 + 16384 + kk*4096 + u*(2048 if perm else 1024)}")

def compute(a, buf, orient, perm=False):
    read_frags(a, buf, 0, 0, perm)
    for kk in range(4):
        st = kk & 1
        if kk < 3:
            read_frags(a, buf, kk + 1, st ^ 1, perm)
            a("s_waitcnt lgkmcnt(6)")
        else:
            a("s_waitcnt lgkmcnt(0)")
        b = FR + 16 * st
        for i in range(2):
            for j in range(2):
                if orient == 'T':
                    A, B = b + 8 + 4 * i, b + 4 * j
                else:
                    A, B = b + 4 * i, b + 8 + 4 * j
                d = acc(i, j)
                a(f"v_mfma_f32_32x32x16_bf16 {vr(d,16)}, {vr(A)}, {vr(B)}, {vr(d,16)}")

def prefetch_setup(a):
    a(f"""v_and_b32 v27, 31, v1
    s_lshl_b32 s36, s27, 5
    v_add_u32 v28, s36, v27
    s_add_u32 s36, s36, s30
    v_add_u32 v27, s36, v27
    v_mul_lo_u32 v27, v27, s20
    v_lshlrev_b32 v29, 7, v8
    v_add3_u32 v27, v27, v29, s41
    v_lshrrev_b32 v29, 1, v28
    v_mul_lo_u32 v29, v29, s21
    v_and_b32 v28, 1, v28
    v_lshl_add_u32 v29, v28, 7, v29
    v_mul_lo_u32 v28, v8, s25
    s_lshl_b32 s37, s31, 1
    s_add_u32 s37, s37, s25
    v_add3_u32 v28, v28, v29, s37""")

PF = int(os.environ.get('GPF', '0'))
def mainloop(a, orient, perm=False):
    issue_loads(a, 0)
    if PF: prefetch_setup(a)
    L, Lskip = a.uniq("gl"), a.uniq("gs")
    a.label(L)
    a("s_waitcnt vmcnt(0)\ns_barrier")
    issue_loads(a, 1)
    if PF:
        a("""buffer_load_dword v29, v27, s[8:11], s23 offen offset:128
        buffer_load_dword v29, v28, s[12:15], s24 offen""")
    compute(a, 0, orient, perm)
    a(f"s_waitcnt vmcnt({2 if PF else 0})\ns_barrier")
    a(f"s_sub_u32 s22, s22, 1\ns_cmp_eq_u32 s22, 0\ns_cbranch_scc1 {Lskip}")
    issue_loads(a, 0)
    a.label(Lskip)
    compute(a, 1, orient, perm)
    a(f"s_cmp_lg_u32 s22, 0\ns_cbranch_scc1 {L}")
    a("s_nop 15")

def setup(a, perm=False):
    a("""v_and_b32 v1, 63, v0
    v_lshrrev_b32 v2, 6, v0
    s_nop 0
    v_readfirstlane_b32 s27, v2
    s_lshl_b32 s26, s27, 12
    s_lshr_b32 s28, s27, 1
    s_and_b32 s29, s27, 1
    v_lshrrev_b32 v2, 3, v1
    v_and_b32 v3, 7, v1
    v_lshrrev_b32 v4, 4, v1
    v_and_b32 v5, 15, v1""")
    for i in range(4):
        a(f"""s_lshl_b32 s36, s27, 5
        s_add_u32 s36, s36, {i*8}
        s_add_u32 s36, s36, s30
        v_add_u32 v6, s36, v2
        v_mul_lo_u32 v6, v6, s20
        v_add_u32 v7, {(i&1)*4}, v4
        v_xor_b32 v7, v7, v3
        v_lshlrev_b32 v7, 4, v7
        v_add3_u32 v{VXG+i}, v6, v7, s41""")
    a("""v_lshlrev_b32 v7, 2, v4
    v_xor_b32 v7, v7, v5
    v_lshlrev_b32 v7, 4, v7
    s_lshl_b32 s37, s31, 1""")
    for i in range(4):
        a(f"""s_lshl_b32 s36, s27, 4
        s_add_u32 s36, s36, {i*4}
        v_add_u32 v6, s36, v4
        v_mul_lo_u32 v6, v6, s21
        v_add3_u32 v{VWG+i}, v6, v7, s37""")
    a("""v_and_b32 v6, 31, v1
    v_lshrrev_b32 v8, 5, v1
    s_lshl_b32 s36, s28, 6
    v_add_u32 v6, s36, v6
    v_bfe_u32 v7, v6, 1, 3
    v_xor_b32 v7, v7, v8
    v_lshlrev_b32 v6, 7, v6""")
    for kk in range(4):
        a(f"""v_xor_b32 v9, {2*kk}, v7
        v_lshl_add_u32 v{VXR+kk}, v9, 4, v6""")
    a(f"""v_bfe_u32 v6, v1, 2, 2
    v_and_b32 v7, 3, v1
    v_bfe_u32 v9, v1, 4, 1
    v_lshlrev_b32 v24, {2 if perm else 3}, v8
    v_add_u32 v24, v24, v6
    v_lshlrev_b32 v24, 8, v24
    v_lshrrev_b32 v25, 1, v7
    v_lshl_add_u32 v25, v9, 1, v25
    s_lshl_b32 s36, s29, 3
    v_add_u32 v25, s36, v25
    v_lshlrev_b32 v26, 2, v6
    v_xor_b32 v25, v25, v26
    v_and_b32 v7, 1, v7
    v_lshl_add_u32 v24, v7, 3, v24""")
    for ni in range(2):
        a(f"""v_xor_b32 v26, {4*ni}, v25
        v_lshl_add_u32 v{VWR+ni}, v26, 4, v24""")
    for r in range(64):
        a(f"v_mov_b32 v{ACC+r}, 0")

def cvt8(a, dst, src, scale=False):
    if scale:
        for r in range(8):
            a(f"v_mul_f32 v{src+r}, s40, v{src+r}")
    for r in range(4):
        a(f"v_cvt_pk_bf16_f32 v{dst+r}, v{src+2*r}, v{src+2*r+1}")

def epi_rowmajor_perm(a, ldo, scale):
    a(f"""v_and_b32 v2, 31, v1
    s_lshl_b32 s36, s28, 6
    s_add_u32 s36, s36, s30
    v_add_u32 v2, s36, v2
    v_mul_u32_u24 v2, {ldo}, v2
    s_lshl_b32 s36, s29, 7
    s_add_u32 s36, s36, s33
    v_lshlrev_b32 v3, 4, v8
    v_add3_u32 v2, v2, v3, s36
    v_add_u32 v3, {32*ldo}, v2""")
    k = 0
    for ni in range(2):
        for mi in range(2):
            for t in range(2):
                T = 24 + 4 * (k & 3); k += 1
                cvt8(a, T, acc(ni, mi) + 8 * t, scale)
                a(f"buffer_store_dwordx4 {vr(T)}, v{2+mi}, s[16:19], 0 offen offset:{ni*64+t*32}")

def epi_colmajor_perm(a):
    a(f"""v_and_b32 v2, 31, v1
    s_lshl_b32 s36, s29, 6
    v_add_u32 v2, s36, v2
    v_lshlrev_b32 v2, 12, v2
    s_lshl_b32 s36, s28, 6
    s_add_u32 s36, s36, s30
    s_lshl_b32 s36, s36, 1
    s_add_u32 s36, s36, s33
    v_lshlrev_b32 v3, 4, v8
    v_add3_u32 v2, v2, v3, s36
    v_add_u32 v3, {32*4096}, v2""")
    k = 0
    for mi in range(2):
        for ni in range(2):
            for t in range(2):
                T = 24 + 4 * (k & 3); k += 1
                cvt8(a, T, acc(mi, ni) + 8 * t)
                a(f"buffer_store_dwordx4 {vr(T)}, v{2+ni}, s[16:19], 0 offen offset:{mi*64+t*32}")

def epi_compact(a):
    a(f"""v_and_b32 v2, 31, v1
    s_lshl_b32 s36, s28, 6
    s_add_u32 s36, s36, s30
    v_add_u32 v2, s36, v2
    v_mul_u32_u24 v2, 40, v2
    v_add_u32 v2, s33, v2
    s_lshl_b32 s36, s29, 4
    s_add_u32 s36, s36, s35
    v_add_u32 v3, s36, v8""")
    k = 0
    for ni in range(2):
        for j in range(4):
            a(f"""v_add_u32 v4, {ni*8+2*j}, v3
            v_mul_u32_u24 v5, 0xcccd, v4
            v_lshrrev_b32 v5, 18, v5
            v_mul_u32_u24 v6, 5, v5
            v_sub_u32 v6, v4, v6
            v_mul_u32_u24 v5, 0x14000, v5
            v_lshl_add_u32 v5, v6, 3, v5
            v_add_u32 v{40+k}, v5, v2""")
            for mi in range(2):
                s = acc(ni, mi) + 4 * j
                T = 24 + 2 * ((2 * k + mi) & 7)
                for r in range(4):
                    a(f"v_mul_f32 v{s+r}, s40, v{s+r}")
                a(f"""v_cvt_pk_bf16_f32 v{T}, v{s}, v{s+1}
                v_cvt_pk_bf16_f32 v{T+1}, v{s+2}, v{s+3}
                buffer_store_dwordx2 {vr(T,2)}, v{40+k}, s[16:19], 0 offen offset:{mi*1280}""")
            k += 1

def epi_out(a, fp32):
    esz = 4 if fp32 else 2
    a(f"""v_and_b32 v2, 31, v1
    s_lshl_b32 s36, s28, 6
    s_add_u32 s36, s36, s30
    v_add_u32 v2, s36, v2
    v_mul_u32_u24 v2, 2560, v2
    s_mul_i32 s36, s29, {64*esz}
    s_add_u32 s36, s36, s33
    v_mul_u32_u24 v3, {4*esz}, v8
    v_add3_u32 v2, v2, v3, s36
    v_add_u32 v3, {32*2560}, v2""")
    k = 0
    for ni in range(2):
        for mi in range(2):
            for j in range(4):
                s = acc(ni, mi) + 4 * j
                off = (ni * 32 + 8 * j) * esz
                if fp32:
                    a(f"buffer_store_dwordx4 {vr(s)}, v{2+mi}, s[16:19], 0 offen offset:{off}")
                else:
                    T = 24 + 2 * (k & 7); k += 1
                    a(f"""v_cvt_pk_bf16_f32 v{T}, v{s}, v{s+1}
                    v_cvt_pk_bf16_f32 v{T+1}, v{s+2}, v{s+3}
                    buffer_store_dwordx2 {vr(T,2)}, v{2+mi}, s[16:19], 0 offen offset:{off}""")


def load_ptr(a, dst, slot):
    a(f"s_load_dwordx2 s[{dst}:{dst+1}], s[0:1], {slot*8}")

def tile_decode(a, base):
    a(f"""s_sub_u32 s35, s2, {base}
    s_and_b32 s30, s35, 15
    s_lshl_b32 s30, s30, 7
    s_lshr_b32 s35, s35, 4
    s_lshl_b32 s31, s35, 7""")

def gen_k1(a):
    name = "proj_kernel"
    kernel_header(a, name)
    cB = f32(128 ** -0.5 * LOG2E); cA = f32(20 ** -0.5 * LOG2E)
    a("""s_cmp_ge_u32 s2, 1776
    s_cbranch_scc1 k1_end
    s_load_dwordx2 s[42:43], s[0:1], 88
    s_mov_b32 s23, 0
    s_mov_b32 s24, 0
    s_mov_b32 s41, 0
    s_mov_b32 s40, 1.0
    s_cmp_ge_u32 s2, 240
    s_cbranch_scc1 k1_p1""")
    load_ptr(a, 4, 0); load_ptr(a, 6, 1)
    tile_decode(a, 0)
    a(f"""s_mov_b32 s20, 1280
    s_mov_b32 s21, 3840
    s_mov_b32 s25, {64*3840}
    s_mov_b32 s22, 5
    s_waitcnt lgkmcnt(0)""")
    srd(a, 8, 4, 2048*640*2); srd(a, 12, 6, 640*1920*2); srd(a, 16, 42, WS_SIZE)
    a(f"""s_cmp_ge_u32 s35, 10
    s_cbranch_scc1 k1_a_v
    s_mov_b32 s32, 1
    s_mov_b32 s33, {WS_KA}
    s_sub_u32 s35, s35, 5
    s_cmp_ge_i32 s35, 0
    s_cbranch_scc1 k1_a_k
    s_add_u32 s35, s35, 5
    s_mov_b32 s33, {WS_QA}
    s_mov_b32 s40, {cA}""")
    a.label("k1_a_k")
    a("s_lshl_b32 s35, s35, 5\ns_branch k1_T")
    a.label("k1_a_v")
    a(f"""s_sub_u32 s35, s35, 10
    s_lshl_b32 s33, s35, 19
    s_add_u32 s33, s33, {WS_VTA}
    s_branch k1_N""")
    a.label("k1_p1")
    a("s_cmp_ge_u32 s2, 752\ns_cbranch_scc1 k1_p2")
    load_ptr(a, 4, 3); load_ptr(a, 6, 5)
    tile_decode(a, 240)
    a(f"""s_mov_b32 s20, 1280
    s_mov_b32 s21, 8192
    s_mov_b32 s25, {64*8192}
    s_mov_b32 s22, 5
    s_mov_b32 s40, {cB}
    s_mov_b32 s32, 0
    s_lshl_b32 s33, s31, 1
    s_add_u32 s33, s33, {WS_QB}
    s_waitcnt lgkmcnt(0)""")
    srd(a, 8, 4, 2048*640*2); srd(a, 12, 6, 640*4096*2); srd(a, 16, 42, WS_SIZE)
    a("s_branch k1_T")
    a.label("k1_p2")
    load_ptr(a, 4, 4)
    a(f"""s_mov_b32 s20, 1024
    s_mov_b32 s21, 8192
    s_mov_b32 s25, {64*8192}
    s_mov_b32 s22, 4
    s_cmp_ge_u32 s2, 1264
    s_cbranch_scc1 k1_p3""")
    load_ptr(a, 6, 6)
    tile_decode(a, 752)
    a(f"""s_mov_b32 s32, 0
    s_lshl_b32 s33, s31, 1
    s_add_u32 s33, s33, {WS_KB}
    s_waitcnt lgkmcnt(0)""")
    srd(a, 8, 4, 2048*512*2); srd(a, 12, 6, 512*4096*2); srd(a, 16, 42, WS_SIZE)
    a("s_branch k1_T")
    a.label("k1_p3")
    load_ptr(a, 6, 7)
    tile_decode(a, 1264)
    a(f"""s_lshl_b32 s33, s31, 12
    s_add_u32 s33, s33, {WS_VTB}
    s_waitcnt lgkmcnt(0)""")
    srd(a, 8, 4, 2048*512*2); srd(a, 12, 6, 512*4096*2); srd(a, 16, 42, WS_SIZE)
    a.label("k1_N")
    setup(a)
    mainloop(a, 'N')
    epi_colmajor_perm(a)
    a("s_endpgm")
    a.label("k1_T")
    setup(a)
    mainloop(a, 'T')
    a("s_cmp_eq_u32 s32, 1\ns_cbranch_scc1 k1_compact")
    epi_rowmajor_perm(a, 8192, True)
    a("s_endpgm")
    a.label("k1_compact")
    epi_compact(a)
    a.label("k1_end")
    a("s_endpgm")
    return kernel_desc(name, 192)

def gen_k3(a):
    name = "oproj_kernel"
    kernel_header(a, name)
    a("""s_cmp_ge_u32 s2, 400
    s_cbranch_scc1 k3_end
    s_load_dwordx2 s[42:43], s[0:1], 88
    s_mov_b32 s21, 1280
    s_mov_b32 s25, 81920
    s_mov_b32 s23, 0
    s_cmp_ge_u32 s2, 320
    s_cbranch_scc1 k3_p1""")
    load_ptr(a, 6, 8)
    a(f"""s_mul_hi_u32 s44, s2, {(1<<32)//80 + 1}
    s_mul_i32 s45, s44, 80
    s_sub_u32 s35, s2, s45
    s_and_b32 s30, s35, 15
    s_lshl_b32 s30, s30, 7
    s_lshr_b32 s35, s35, 4
    s_lshl_b32 s31, s35, 7
    s_mov_b32 s20, 8192
    s_mov_b32 s22, 8
    s_lshl_b32 s41, s44, 11
    s_add_u32 s41, s41, {WS_CTX}
    s_mul_i32 s24, s44, {1024*1280}
    s_mul_i32 s33, s44, {2048*640*4}
    s_add_u32 s33, s33, {WS_PART}
    s_lshl_b32 s45, s31, 2
    s_add_u32 s33, s33, s45
    s_waitcnt lgkmcnt(0)""")
    srd(a, 8, 42, WS_SIZE); srd(a, 12, 6, 4096*640*2); srd(a, 16, 42, WS_SIZE)
    setup(a, True)
    mainloop(a, 'T', True)
    epi_out(a, True)
    a("s_endpgm")
    a.label("k3_p1")
    load_ptr(a, 6, 2); load_ptr(a, 4, 9)
    tile_decode(a, 320)
    a(f"""s_mov_b32 s20, 1280
    s_mov_b32 s22, 5
    s_mov_b32 s41, {WS_OA}
    s_mov_b32 s24, 0
    s_lshl_b32 s33, s31, 1
    s_waitcnt lgkmcnt(0)""")
    srd(a, 8, 42, WS_SIZE); srd(a, 12, 6, 640*640*2); srd(a, 16, 4, 2048*1280*2)
    setup(a)
    mainloop(a, 'T')
    epi_out(a, False)
    a.label("k3_end")
    a("s_endpgm")
    return kernel_desc(name, 192)

def gen_k4(a):
    name = "reduce_kernel"
    kernel_header(a, name)
    a(f"""s_cmp_ge_u32 s2, 640
    s_cbranch_scc1 k4_end
    s_load_dwordx2 s[4:5], s[0:1], 72
    s_load_dwordx2 s[6:7], s[0:1], 88
    s_lshl_b32 s3, s2, 8
    v_add_u32 v1, s3, v0
    v_lshlrev_b32 v2, 5, v1
    s_mov_b32 s20, {(1<<32)//80 + 1}
    v_mul_hi_u32 v3, v1, s20
    v_mul_u32_u24 v4, 80, v3
    v_sub_u32 v4, v1, v4
    v_mul_u32_u24 v3, 2560, v3
    v_lshl_add_u32 v3, v4, 4, v3
    s_waitcnt lgkmcnt(0)""")
    srd(a, 8, 4, 2048*1280*2); srd(a, 12, 6, WS_SIZE)
    for ks in range(4):
        a(f"""s_mov_b32 s{20+ks}, {WS_PART + ks*2048*640*4}
        buffer_load_dwordx4 {vr(8+8*ks)}, v2, s[12:15], s{20+ks} offen
        buffer_load_dwordx4 {vr(12+8*ks)}, v2, s[12:15], s{20+ks} offen offset:16""")
    a("s_waitcnt vmcnt(0)")
    for r in range(8):
        a(f"""v_add_f32 v{8+r}, v{8+r}, v{16+r}
        v_add_f32 v{24+r}, v{24+r}, v{32+r}""")
    for r in range(8):
        a(f"v_add_f32 v{8+r}, v{8+r}, v{24+r}")
    for r in range(4):
        a(f"v_cvt_pk_bf16_f32 v{40+r}, v{8+2*r}, v{9+2*r}")
    a("buffer_store_dwordx4 v[40:43], v3, s[8:11], 0 offen offset:1280")
    a.label("k4_end")
    a("s_endpgm")
    return kernel_desc(name, 48)
```

```python
from common import *
VXG, VWG = 10, 14
VXR, VWR = 18, 26
FR = 64
ACC = 128

def acc(mi, ni):
    return ACC + (ni * 4 + mi) * 16

def issue_loads(a, buf):
    for i in range(4):
        a(f"""s_add_u32 m0, s26, {buf*65536 + i*1024}
        s_nop 0
        buffer_load_dwordx4 v{VXG+i}, s[8:11], s23 offen lds""")
    for i in range(4):
        a(f"""s_add_u32 m0, s26, {buf*65536 + 32768 + i*1024}
        s_nop 0
        buffer_load_dwordx4 v{VWG+i}, s[12:15], s24 offen lds""")
    a("""s_add_u32 s23, s23, 128
    s_add_u32 s24, s24, s25""")

def read_frags(a, buf, kk, st, perm):
    b = FR + 24 * st
    for ni in range(2):
        for u in range(2):
            a(f"ds_read_b64_tr_b16 {vr(b+16+4*ni+2*u,2)}, v{VWR+2*buf+ni} offset:{kk*4096 + u*(2048 if perm else 1024)}")
    for mi in range(4):
        a(f"ds_read_b128 {vr(b+4*mi)}, v{VXR+4*buf+kk} offset:{mi*4096}")

def compute(a, buf, orient, perm):
    read_frags(a, buf, 0, 0, perm)
    for kk in range(4):
        st = kk & 1
        if kk < 3:
            read_frags(a, buf, kk + 1, st ^ 1, perm)
        b = FR + 24 * st
        for mi in range(4):
            a(f"s_waitcnt lgkmcnt({(8 if kk < 3 else 0) + 3 - mi})")
            for ni in range(2):
                X, W = b + 4 * mi, b + 16 + 4 * ni
                A, B = (W, X) if orient == 'T' else (X, W)
                d = acc(mi, ni)
                a(f"v_mfma_f32_32x32x16_bf16 {vr(d,16)}, {vr(A)}, {vr(B)}, {vr(d,16)}")

def mainloop(a, orient, perm=False):
    issue_loads(a, 0)
    L, Lskip = a.uniq("gl"), a.uniq("gs")
    a.label(L)
    a("s_waitcnt vmcnt(0)\ns_barrier")
    issue_loads(a, 1)
    compute(a, 0, orient, perm)
    a("s_waitcnt vmcnt(0)\ns_barrier")
    a(f"s_sub_u32 s22, s22, 1\ns_cmp_eq_u32 s22, 0\ns_cbranch_scc1 {Lskip}")
    issue_loads(a, 0)
    a.label(Lskip)
    compute(a, 1, orient, perm)
    a(f"s_cmp_lg_u32 s22, 0\ns_cbranch_scc1 {L}")
    a("s_nop 15")

def setup(a, perm=False):
    a("""v_and_b32 v1, 63, v0
    v_lshrrev_b32 v2, 6, v0
    s_nop 0
    v_readfirstlane_b32 s27, v2
    s_lshl_b32 s26, s27, 12
    s_lshr_b32 s28, s27, 2
    s_and_b32 s29, s27, 3
    v_lshrrev_b32 v2, 3, v1
    v_and_b32 v3, 7, v1
    v_lshrrev_b32 v4, 4, v1
    v_and_b32 v5, 15, v1""")
    for i in range(4):
        a(f"""s_lshl_b32 s36, s27, 5
        s_add_u32 s36, s36, {i*8}
        s_add_u32 s36, s36, s30
        v_add_u32 v6, s36, v2
        v_mul_lo_u32 v6, v6, s20
        v_add_u32 v7, {(i&1)*4}, v4
        v_xor_b32 v7, v7, v3
        v_lshlrev_b32 v7, 4, v7
        v_add3_u32 v{VXG+i}, v6, v7, s41""")
    a("""v_lshlrev_b32 v7, 2, v4
    v_xor_b32 v7, v7, v5
    v_lshlrev_b32 v7, 4, v7
    s_lshl_b32 s37, s28, 7
    s_add_u32 s37, s37, s31
    s_lshl_b32 s37, s37, 1""")
    for i in range(4):
        a(f"""s_lshl_b32 s36, s29, 4
        s_add_u32 s36, s36, {i*4}
        v_add_u32 v6, s36, v4
        v_mul_lo_u32 v6, v6, s21
        v_add3_u32 v{VWG+i}, v6, v7, s37""")
    a("""v_and_b32 v6, 31, v1
    v_lshrrev_b32 v8, 5, v1
    v_bfe_u32 v7, v6, 1, 3
    v_xor_b32 v7, v7, v8
    v_lshlrev_b32 v6, 7, v6
    s_lshl_b32 s36, s28, 14
    v_add_u32 v6, s36, v6""")
    for kk in range(4):
        a(f"""v_xor_b32 v9, {2*kk}, v7
        v_lshl_add_u32 v{VXR+kk}, v9, 4, v6
        v_add_u32 v{VXR+4+kk}, 0x10000, v{VXR+kk}""")
    a(f"""v_bfe_u32 v6, v1, 2, 2
    v_and_b32 v7, 3, v1
    v_bfe_u32 v9, v1, 4, 1
    v_lshlrev_b32 v30, {2 if perm else 3}, v8
    v_add_u32 v30, v30, v6
    v_lshlrev_b32 v30, 8, v30
    v_lshrrev_b32 v31, 1, v7
    v_lshl_add_u32 v31, v9, 1, v31
    s_and_b32 s36, s29, 1
    s_lshl_b32 s36, s36, 3
    v_add_u32 v31, s36, v31
    v_lshlrev_b32 v32, 2, v6
    v_xor_b32 v31, v31, v32
    v_and_b32 v7, 1, v7
    v_lshl_add_u32 v30, v7, 3, v30
    s_lshr_b32 s36, s29, 1
    s_lshl_b32 s36, s36, 14
    s_add_u32 s36, s36, 32768
    v_add_u32 v30, s36, v30""")
    for ni in range(2):
        a(f"""v_xor_b32 v32, {4*ni}, v31
        v_lshl_add_u32 v{VWR+ni}, v32, 4, v30
        v_add_u32 v{VWR+2+ni}, 0x10000, v{VWR+ni}""")
    for r in range(128):
        a(f"v_mov_b32 v{ACC+r}, 0")

def cvt8(a, dst, src, scale=False):
    if scale:
        for r in range(8):
            a(f"v_mul_f32 v{src+r}, s40, v{src+r}")
    for r in range(4):
        a(f"v_cvt_pk_bf16_f32 v{dst+r}, v{src+2*r}, v{src+2*r+1}")

def epi_rowmajor_perm(a, ldo, scale):
    a(f"""v_and_b32 v2, 31, v1
    s_lshl_b32 s36, s28, 7
    s_add_u32 s36, s36, s30
    v_add_u32 v2, s36, v2
    v_mul_u32_u24 v2, {ldo}, v2
    s_lshl_b32 s36, s29, 7
    s_add_u32 s36, s36, s33
    v_lshlrev_b32 v3, 4, v8
    v_add3_u32 v2, v2, v3, s36
    v_add_u32 v3, {32*ldo}, v2
    v_add_u32 v4, {64*ldo}, v2
    v_add_u32 v5, {96*ldo}, v2""")
    k = 0
    for mi in range(4):
        for ni in range(2):
            for t in range(2):
                T = 32 + 4 * (k & 7); k += 1
                cvt8(a, T, acc(mi, ni) + 8 * t, scale)
                a(f"buffer_store_dwordx4 {vr(T)}, v{2+mi}, s[16:19], 0 offen offset:{ni*64+t*32}")

def epi_colmajor_perm(a):
    a(f"""v_and_b32 v2, 31, v1
    s_lshl_b32 s36, s29, 6
    v_add_u32 v2, s36, v2
    v_lshlrev_b32 v2, 12, v2
    s_lshl_b32 s36, s28, 7
    s_add_u32 s36, s36, s30
    s_lshl_b32 s36, s36, 1
    s_add_u32 s36, s36, s33
    v_lshlrev_b32 v3, 4, v8
    v_add3_u32 v2, v2, v3, s36
    v_add_u32 v3, {32*4096}, v2""")
    k = 0
    for ni in range(2):
        for mi in range(4):
            for t in range(2):
                T = 32 + 4 * (k & 7); k += 1
                cvt8(a, T, acc(mi, ni) + 8 * t)
                a(f"buffer_store_dwordx4 {vr(T)}, v{2+ni}, s[16:19], 0 offen offset:{mi*64+t*32}")

def epi_compact(a):
    a(f"""v_and_b32 v2, 31, v1
    s_lshl_b32 s36, s28, 7
    s_add_u32 s36, s36, s30
    v_add_u32 v2, s36, v2
    v_mul_u32_u24 v2, 40, v2
    v_add_u32 v2, s33, v2
    v_add_u32 v3, s35, v8""")
    k = 0
    for ni in range(2):
        for j in range(4):
            a(f"""v_add_u32 v4, {ni*8+2*j}, v3
            v_mul_u32_u24 v5, 0xcccd, v4
            v_lshrrev_b32 v5, 18, v5
            v_mul_u32_u24 v6, 5, v5
            v_sub_u32 v6, v4, v6
            v_mul_u32_u24 v5, 0x14000, v5
            v_lshl_add_u32 v5, v6, 3, v5
            v_add_u32 v{10+k}, v5, v2""")
            for mi in range(4):
                s = acc(mi, ni) + 4 * j
                T = 32 + 2 * ((4 * k + mi) & 15)
                for r in range(4):
                    a(f"v_mul_f32 v{s+r}, s40, v{s+r}")
                a(f"""v_cvt_pk_bf16_f32 v{T}, v{s}, v{s+1}
                v_cvt_pk_bf16_f32 v{T+1}, v{s+2}, v{s+3}
                buffer_store_dwordx2 {vr(T,2)}, v{10+k}, s[16:19], 0 offen offset:{mi*1280}""")
            k += 1

def load_ptr(a, dst, slot):
    a(f"s_load_dwordx2 s[{dst}:{dst+1}], s[0:1], {slot*8}")

def tile_decode(a, base, ntb):
    a(f"""s_sub_u32 s35, s2, {base}
    s_and_b32 s36, s35, 1
    s_lshl_b32 s36, s36, 2
    s_bfe_u32 s37, s35, 0x20003
    s_add_u32 s30, s36, s37
    s_lshl_b32 s30, s30, 8
    s_bfe_u32 s36, s35, 0x20001
    s_mul_i32 s36, s36, {ntb}
    s_lshr_b32 s37, s35, 5
    s_add_u32 s35, s36, s37
    s_lshl_b32 s31, s35, 8""")

def gen_k1(a):
    name = "proj_kernel"
    kernel_header(a, name)
    cB = f32(128 ** -0.5 * LOG2E); cA = f32(20 ** -0.5 * LOG2E)
    a("""s_cmp_ge_u32 s2, 448
    s_cbranch_scc1 k1_end
    s_load_dwordx2 s[42:43], s[0:1], 88
    s_mov_b32 s23, 0
    s_mov_b32 s24, 0
    s_mov_b32 s41, 0
    s_mov_b32 s40, 1.0
    s_cmp_ge_u32 s2, 384
    s_cbranch_scc1 k1_pa
    s_mov_b32 s21, 8192
    s_mov_b32 s25, 524288
    s_cmp_ge_u32 s2, 128
    s_cbranch_scc1 k1_p2""")
    load_ptr(a, 4, 3); load_ptr(a, 6, 5)
    tile_decode(a, 0, 4)
    a(f"""s_mov_b32 s20, 1280
    s_mov_b32 s22, 5
    s_mov_b32 s40, {cB}
    s_mov_b32 s32, 0
    s_lshl_b32 s33, s31, 1
    s_add_u32 s33, s33, {WS_QB}
    s_waitcnt lgkmcnt(0)""")
    srd(a, 8, 4, 2048*640*2); srd(a, 12, 6, 640*4096*2); srd(a, 16, 42, WS_SIZE)
    a("s_branch k1_T")
    a.label("k1_p2")
    load_ptr(a, 4, 4)
    a(f"""s_mov_b32 s20, 1024
    s_mov_b32 s22, 4
    s_cmp_ge_u32 s2, 256
    s_cbranch_scc1 k1_p3""")
    load_ptr(a, 6, 6)
    tile_decode(a, 128, 4)
    a(f"""s_mov_b32 s32, 0
    s_lshl_b32 s33, s31, 1
    s_add_u32 s33, s33, {WS_KB}
    s_waitcnt lgkmcnt(0)""")
    srd(a, 8, 4, 2048*512*2); srd(a, 12, 6, 512*4096*2); srd(a, 16, 42, WS_SIZE)
    a("s_branch k1_T")
    a.label("k1_p3")
    load_ptr(a, 6, 7)
    tile_decode(a, 256, 4)
    a(f"""s_lshl_b32 s33, s31, 12
    s_add_u32 s33, s33, {WS_VTB}
    s_mov_b32 s32, 0
    s_waitcnt lgkmcnt(0)""")
    srd(a, 8, 4, 2048*512*2); srd(a, 12, 6, 512*4096*2); srd(a, 16, 42, WS_SIZE)
    a("s_branch k1_N")
    a.label("k1_pa")
    load_ptr(a, 4, 0); load_ptr(a, 6, 1)
    tile_decode(a, 384, 2)
    a(f"""s_mov_b32 s20, 1280
    s_mov_b32 s21, 3840
    s_mov_b32 s25, {64*3840}
    s_mov_b32 s22, 5
    s_mov_b32 s32, 1
    s_waitcnt lgkmcnt(0)""")
    srd(a, 8, 4, 2048*640*2); srd(a, 12, 6, 640*1920*2); srd(a, 16, 42, WS_SIZE)
    a(f"""s_cmp_lt_u32 s35, 5
    s_cbranch_scc1 k1_T
    s_sub_u32 s33, s31, 1280
    s_lshl_b32 s33, s33, 12
    s_add_u32 s33, s33, {WS_VTA}""")
    a.label("k1_N")
    setup(a)
    mainloop(a, 'N')
    a("""s_cmp_eq_u32 s32, 0
    s_cbranch_scc1 k1_Nst
    s_lshl_b32 s36, s29, 6
    s_add_u32 s36, s36, s31
    s_cmp_ge_u32 s36, 1920
    s_cbranch_scc1 k1_end""")
    a.label("k1_Nst")
    epi_colmajor_perm(a)
    a("s_endpgm")
    a.label("k1_T")
    setup(a)
    mainloop(a, 'T')
    a("s_cmp_eq_u32 s32, 1\ns_cbranch_scc1 k1_compact")
    epi_rowmajor_perm(a, 8192, True)
    a("s_endpgm")
    a.label("k1_compact")
    a(f"""s_lshl_b32 s35, s29, 6
    s_add_u32 s35, s35, s31
    s_mov_b32 s33, {WS_QA}
    s_mov_b32 s40, {cA}
    s_cmp_lt_u32 s35, 640
    s_cbranch_scc1 k1_cq
    s_sub_u32 s35, s35, 640
    s_mov_b32 s33, {WS_KA}
    s_mov_b32 s40, 1.0""")
    a.label("k1_cq")
    a("s_lshr_b32 s35, s35, 2")
    epi_compact(a)
    a.label("k1_end")
    a("s_endpgm")
    return kernel_desc(name, 256)
```

```python
from common import *
import os

VRA, VRB, VDA, VL, VMX, VT, QF = 16, 24, 28, 36, 38, 4, 40
RING, NRING, AHEAD = 232, 6, int(os.environ.get('AHEAD', '3'))

class Cfg: pass
def cfgB():
    c = Cfg(); c.isA = False; c.nt = 8; c.ndt = 4; c.nq = 1
    c.S = [72, 104]; c.NEG = 136; c.P = 152; c.O = 168
    return c
def cfgA():
    c = Cfg(); c.isA = True; c.nt = 2; c.ndt = 1; c.nq = 2
    c.S = [72, 104]; c.NEG = 136; c.P = 168; c.O = 184
    return c

class Seq:
    def __init__(self, a):
        self.a = a; self.items = []; self.ri = 0
    def mfma(self, fkey, readfn, fmt):
        self.items.append(('m', fkey, readfn, fmt))
    def block(self, mf, fillers, tail=None):
        n = len(mf)
        if n == 0:
            for f in fillers: self.items.append(('f', f))
        else:
            for j, m in enumerate(mf):
                for f in fillers[j * len(fillers) // n:(j + 1) * len(fillers) // n]:
                    self.items.append(('f', f))
                self.items.append(('m',) + m)
        if tail: self.items.append(('f', tail))
    def emit(self):
        a = self.a
        keys = []
        for it in self.items:
            if it[0] == 'm' and it[1] not in keys: keys.append(it[1])
        rd = {it[1]: it[2] for it in self.items if it[0] == 'm'}
        regs = {}; cnt = {}; order = []
        issued = 0
        def issue():
            nonlocal issued
            k = keys[issued]; r = RING + 4 * (self.ri % NRING); self.ri += 1
            regs[k] = r; cnt[k] = rd[k](r); order.append(k); issued += 1
        while issued < min(1 + AHEAD, len(keys)): issue()
        for it in self.items:
            if it[0] == 'f':
                a(it[1]); continue
            k = it[1]
            ki = keys.index(k)
            while issued < min(ki + 1 + AHEAD, len(keys)): issue()
            if k in order:
                later = order[order.index(k) + 1:]
                a(f"s_waitcnt lgkmcnt({sum(cnt[x] for x in later)})")
                order = later
            a(it[3].replace("FRAG", vr(regs[k])))
        self.items = []

def qk_mfmas(a, c, par, kb, kstep):
    out = []
    if not c.isA:
        for z in range(2):
            for t in range(8):
                def rdf(r, z=z, t=t):
                    a(f"ds_read_b128 {vr(r)}, v{VRA+t} offset:{kb*16384 + z*8192}"); return 1
                d = c.S[par] + 16 * z
                cin = vr(c.NEG, 16) if t == 0 else vr(d, 16)
                out.append((('k', z, t), rdf, f"v_mfma_f32_32x32x16_bf16 {vr(d,16)}, FRAG, {vr(QF+4*t)}, {cin}"))
    else:
        off = kstep * 32 * 40
        for t in range(2):
            def rdf(r, t=t):
                if t == 0:
                    a(f"ds_read_b64 {vr(r,2)}, v{VRB} offset:{off}\nds_read_b64 {vr(r+2,2)}, v{VRB} offset:{off+8}"); return 2
                a(f"ds_read_b64 {vr(r,2)}, v{VRB+1} offset:{off}\nv_mov_b32 v{r+2}, 0\nv_mov_b32 v{r+3}, 0"); return 1
            for z in range(2):
                d = c.S[par] + 16 * z
                cin = vr(c.NEG + 16 * z, 16) if t == 0 else vr(d, 16)
                out.append((('k', t), rdf, f"v_mfma_f32_32x32x16_bf16 {vr(d,16)}, FRAG, {vr(QF+(2*z+t)*4)}, {cin}"))
    return out

def pv_mfmas(a, c, vb, vstep):
    out = []
    if not c.isA:
        for tt in range(4):
            for dt in range(4):
                def rdf(r, tt=tt, dt=dt):
                    a(f"ds_read_b128 {vr(r)}, v{VRB+tt} offset:{32768 + vb*16384 + dt*4096}"); return 1
                o = c.O + 16 * dt; p = c.P + 4 * tt
                out.append((('v', tt, dt), rdf, f"v_mfma_f32_32x32x16_bf16 {vr(o,16)}, FRAG, {vr(p)}, {vr(o,16)}"))
    else:
        for z in range(2):
            for tt in range(2):
                def rdf(r, tt=tt):
                    a(f"ds_read_b128 {vr(r)}, v{VRA+2*vstep+tt} offset:8192"); return 1
                o = c.O + 16 * z; p = c.P + 8 * z + 4 * tt
                out.append((('v', tt), rdf, f"v_mfma_f32_32x32x16_bf16 {vr(o,16)}, FRAG, {vr(p)}, {vr(o,16)}"))
    return out

def sm_exp(c, par, z):
    b = c.S[par] + 16 * z
    return [f"v_exp_f32 v{b+r}, v{b+r}" for r in range(16)]
def sm_cvt(c, par, z):
    b = c.S[par] + 16 * z
    return [f"v_cvt_pk_bf16_f32 v{c.P+8*z+r}, v{b+2*r}, v{b+2*r+1}" for r in range(8)]
def sm_add(c, par, z):
    if c.isA: return []
    b = c.S[par] + 16 * z
    return [f"v_add_f32 v{VL+(r&1)}, v{VL+(r&1)}, v{b+r}" for r in range(16)]
def sm_mask(c, par):
    out = []
    for z in range(2):
        for r in range(16):
            k = z * 32 + 8 * (r >> 2) + (r & 3); s = c.S[par] + 16 * z + r
            out.append(f"v_cmp_gt_i32 vcc, {k}, v3\ns_nop 1\nv_cndmask_b32 v{s}, v{s}, v2, vcc")
    return out
def sm_max(c, par):
    out = []
    b = c.S[par]
    if not c.isA:
        m0, m1 = VMX, VT
        out += [f"v_max3_f32 v{m0}, v{b}, v{b+1}, v{b+2}", f"v_max3_f32 v{m1}, v{b+3}, v{b+4}, v{b+5}"]
        for i in range(6, 30, 4):
            out += [f"v_max3_f32 v{m0}, v{m0}, v{b+i}, v{b+i+1}", f"v_max3_f32 v{m1}, v{m1}, v{b+i+2}, v{b+i+3}"]
        out += [f"v_max3_f32 v{m0}, v{m0}, v{b+30}, v{b+31}", f"v_max_f32 v{m0}, v{m0}, v{m1}",
                f"v_cmp_lt_f32 vcc, s30, v{m0}"]
    else:
        for i in range(0, 16, 2):
            for z in range(2):
                m = VMX + z; s = b + 16 * z
                if i == 0: out.append(f"v_max_f32 v{m}, v{s}, v{s+1}")
                else: out.append(f"v_max3_f32 v{m}, v{m}, v{s+i}, v{s+i+1}")
        out += [f"v_max_f32 v{VT+2}, v{VMX}, v{VMX+1}", f"v_cmp_lt_f32 vcc, s30, v{VT+2}"]
    return out

def branch_slow(a, slow, par):
    Ls, Lr = a.uniq("slow"), a.uniq("ret")
    slow.append((Ls, Lr, par))
    a(f"s_nop 1\ns_cbranch_vccnz {Ls}")
    a.label(Lr)

def prologue_qk(a, c, sq, slow, masked):
    sq.block(qk_mfmas(a, c, 0, 0, 0), [])
    sq.emit()
    a("s_nop 7\ns_nop 7")
    for f in (sm_mask(c, 0) if masked else []) + sm_max(c, 0): a(f)
    branch_slow(a, slow, 0)

def iteration(a, c, sq, slow, par, kb, kstep, vb, vstep, do_qk, masked, mid=None):
    nx = par ^ 1
    pv = pv_mfmas(a, c, vb, vstep)
    h = len(pv) // 2
    sq.block(qk_mfmas(a, c, nx, kb, kstep) if do_qk else [],
             sm_exp(c, par, 0) + sm_cvt(c, par, 0) + sm_add(c, par, 0), "s_nop 1")
    sq.block(pv[:h], sm_exp(c, par, 1) + sm_cvt(c, par, 1), "s_nop 1")
    f2 = sm_add(c, par, 1)
    if do_qk:
        f2 += (sm_mask(c, nx) if masked else []) + sm_max(c, nx)
    sq.block(pv[h:], f2)
    sq.emit()
    if mid: a(mid)
    if do_qk: branch_slow(a, slow, nx)

def slow_path(a, c, Ls, Lr, par):
    a.label(Ls)
    a("s_nop 7\ns_nop 7")
    for qs in range(c.nq):
        m = VMX + qs
        a(f"""v_mov_b32 v{VT}, v{m}
        v_mov_b32 v{VT+1}, v{m}
        s_nop 1
        v_permlane32_swap_b32 v{VT}, v{VT+1}
        v_max_f32 v{VT}, v{VT}, v{VT+1}
        v_max_f32 v{VT}, s31, v{VT}
        v_max_f32 v{VT+1}, 0, v{VT}
        v_sub_f32 v{VT+1}, 0, v{VT+1}
        v_exp_f32 v{VT+1}, v{VT+1}""")
        for r in range(16):
            a(f"v_sub_f32 v{c.NEG+16*qs+r}, v{c.NEG+16*qs+r}, v{VT}")
        ns = 32 // c.nq
        for r in range(ns):
            a(f"v_sub_f32 v{c.S[par]+ns*qs+r}, v{c.S[par]+ns*qs+r}, v{VT}")
        for r in range(16 * c.ndt):
            a(f"v_mul_f32 v{c.O+16*c.ndt*qs+r}, v{c.O+16*c.ndt*qs+r}, v{VT+1}")
        if not c.isA:
            a(f"v_mul_f32 v{VL}, v{VL}, v{VT+1}\nv_mul_f32 v{VL+1}, v{VL+1}, v{VT+1}")
    a(f"s_mov_b32 s30, 8.0\ns_mov_b32 s31, 0\ns_branch {Lr}")

def rd_addr_256(a):
    a("""v_and_b32 v4, 31, v1
    v_and_b32 v5, 15, v1
    v_xor_b32 v5, v5, v8
    v_lshlrev_b32 v4, 8, v4""")
    for t in range(8):
        a(f"v_xor_b32 v6, {2*t}, v5\nv_lshl_add_u32 v{VRA+t}, v6, 4, v4")

def init_state(a, c):
    for r in range(16 * c.nq): a(f"v_mov_b32 v{c.NEG+r}, 0")
    for r in range(16 * c.ndt * c.nq): a(f"v_mov_b32 v{c.O+r}, 0")
    a(f"""v_mov_b32 v{VL}, 0
    v_mov_b32 v{VL+1}, 0
    s_mov_b32 s30, 0xff7fffff
    s_mov_b32 s31, 0xff7fffff""")

def gen_attn(a):
    name = "attn_kernel"
    kernel_header(a, name)
    a("""s_cmp_ge_u32 s2, 512
    s_cbranch_scc1 at_end
    s_load_dwordx2 s[4:5], s[0:1], 88
    v_and_b32 v1, 63, v0
    v_lshrrev_b32 v2, 6, v0
    v_lshrrev_b32 v8, 5, v1
    v_readfirstlane_b32 s27, v2
    s_and_b32 s20, s2, 31
    s_waitcnt lgkmcnt(0)""")
    srd(a, 8, 4, WS_SIZE)
    a("s_cmp_ge_u32 s2, 256\ns_cbranch_scc1 at_A")
    c = cfgB(); sq = Seq(a)
    if os.environ.get('SKIP_B'): a("s_endpgm")
    rd_addr_256(a)
    a("""v_and_b32 v4, 31, v1
    v_bfe_u32 v5, v1, 1, 3
    v_xor_b32 v5, v5, v8
    v_lshlrev_b32 v4, 7, v4""")
    for tt in range(4):
        a(f"v_xor_b32 v6, {2*tt}, v5\nv_lshl_add_u32 v{VRB+tt}, v6, 4, v4")
    a(f"""v_lshrrev_b32 v4, 4, v1
    v_and_b32 v5, 15, v1
    s_lshl_b32 s36, s20, 13
    s_add_u32 s36, s36, {WS_KB}""")
    for i in range(4):
        a(f"""s_lshl_b32 s37, s27, 4
        s_add_u32 s37, s37, {4*i}
        v_add_u32 v6, s37, v4
        v_and_b32 v7, 15, v6
        v_xor_b32 v7, v7, v5
        v_lshrrev_b32 v10, 5, v6
        v_lshlrev_b32 v10, 18, v10
        v_and_b32 v6, 31, v6
        v_lshl_add_u32 v10, v6, 5, v10
        v_lshrrev_b32 v6, 1, v7
        v_lshl_add_u32 v10, v6, 10, v10
        v_and_b32 v7, 1, v7
        v_lshl_add_u32 v10, v7, 4, v10
        v_add_u32 v{VDA+i}, s36, v10""")
    a(f"""v_lshrrev_b32 v4, 3, v1
    v_and_b32 v5, 7, v1
    s_lshl_b32 s36, s20, 19
    s_add_u32 s36, s36, {WS_VTB}""")
    for i in range(4):
        a(f"""s_lshl_b32 s37, s27, 5
        s_add_u32 s37, s37, {8*i}
        v_add_u32 v6, s37, v4
        v_bfe_u32 v7, v6, 1, 3
        v_xor_b32 v7, v7, v5
        v_lshrrev_b32 v10, 5, v6
        v_lshlrev_b32 v10, 17, v10
        v_and_b32 v6, 31, v6
        v_lshl_add_u32 v10, v6, 5, v10
        v_lshrrev_b32 v6, 1, v7
        v_lshl_add_u32 v10, v6, 10, v10
        v_and_b32 v7, 1, v7
        v_lshl_add_u32 v10, v7, 4, v10
        v_add_u32 v{VDA+4+i}, s36, v10""")
    a("""s_lshl_b32 s26, s27, 12
    s_lshr_b32 s21, s2, 5
    s_sub_u32 s21, 15, s21
    s_mov_b32 s50, 2
    v_mov_b32 v2, 0xf149f2ca""")
    def loadK(buf):
        for i in range(4):
            a(f"s_add_u32 m0, s26, {buf*16384 + i*1024}\ns_nop 0\nbuffer_load_dwordx4 v{VDA+i}, s[8:11], s23 offen lds")
        a(f"s_add_u32 s23, s23, {64*8192}")
    def loadV(buf):
        for i in range(4):
            a(f"s_add_u32 m0, s26, {32768 + buf*16384 + i*1024}\ns_nop 0\nbuffer_load_dwordx4 v{VDA+4+i}, s[8:11], s24 offen lds")
        a("s_add_u32 s24, s24, 4096")
    a.label("atB_outer")
    a(f"""s_mov_b32 s23, 0
    s_mov_b32 s24, 0
    s_barrier""")
    loadK(0)
    a(f"""s_lshl_b32 s22, s21, 7
    s_lshl_b32 s36, s27, 5
    s_add_u32 s22, s22, s36
    v_and_b32 v4, 31, v1
    v_add_u32 v9, s22, v4
    v_lshlrev_b32 v15, 5, v4
    v_lshl_add_u32 v15, v8, 4, v15
    s_lshl_b32 s22, s22, 13
    s_lshl_b32 s36, s20, 13
    s_add_u32 s36, s36, s22
    v_add_u32 v15, s36, v15
    s_movk_i32 s37, 0x1000""")
    for t in range(8):
        a(f"buffer_load_dwordx4 {vr(QF+4*t)}, v15, s[8:11], {'s37' if t >= 4 else '0'} offen offset:{(t&3)*1024}")
    loadK(1); loadV(0)
    init_state(a, c)
    a("""v_lshlrev_b32 v3, 2, v8
    v_sub_u32 v3, v9, v3
    s_waitcnt vmcnt(8)
    s_barrier""")
    slow = []
    prologue_qk(a, c, sq, slow, True)
    a("v_subrev_u32 v3, 64, v3\ns_waitcnt vmcnt(0)\ns_barrier\ns_cmp_eq_u32 s21, 0\ns_cbranch_scc1 atB_i0")
    loadK(0); loadV(1)
    a.label("atB_i0")
    iteration(a, c, sq, slow, 0, 1, 0, 0, 0, True, True)
    a("s_cmp_eq_u32 s21, 0\ns_cbranch_scc1 atB_final\ns_mov_b32 s22, s21\ns_cmp_eq_u32 s21, 1\ns_cbranch_scc1 atB_mpair")
    a.label("atB_loop")
    a("s_waitcnt vmcnt(0)\ns_barrier"); loadK(1); loadV(0)
    iteration(a, c, sq, slow, 1, 0, 0, 1, 0, True, False)
    a("s_waitcnt vmcnt(0)\ns_barrier"); loadK(0); loadV(1)
    iteration(a, c, sq, slow, 0, 1, 0, 0, 0, True, False)
    a("s_sub_u32 s22, s22, 1\ns_cmp_lg_u32 s22, 1\ns_cbranch_scc1 atB_loop")
    a.label("atB_mpair")
    a("""s_lshl_b32 s36, s21, 7
    v_lshlrev_b32 v3, 2, v8
    v_sub_u32 v3, v9, v3
    v_subrev_u32 v3, s36, v3
    s_waitcnt vmcnt(0)
    s_barrier""")
    loadK(1); loadV(0)
    iteration(a, c, sq, slow, 1, 0, 0, 1, 0, True, True)
    a("v_subrev_u32 v3, 64, v3\ns_waitcnt vmcnt(0)\ns_barrier"); loadV(1)
    iteration(a, c, sq, slow, 0, 1, 0, 0, 0, True, True)
    a.label("atB_final")
    a("s_cmp_lg_u32 s21, 0\ns_cbranch_scc1 atB_f2")
    loadV(1)
    a.label("atB_f2")
    a("s_waitcnt vmcnt(0)\ns_barrier")
    iteration(a, c, sq, slow, 1, 0, 0, 1, 0, False, False)
    a(f"""v_add_f32 v{VL}, v{VL}, v{VL+1}
    v_mov_b32 v{VL+1}, v{VL}
    s_nop 1
    v_permlane32_swap_b32 v{VL}, v{VL+1}
    v_add_f32 v{VL}, v{VL}, v{VL+1}
    v_rcp_f32 v{VL}, v{VL}
    v_add_u32 v15, {WS_CTX - WS_QB}, v15
    s_movk_i32 s37, 0x1000
    s_nop 7""")
    k = 0
    for dt in range(4):
        for t in range(2):
            T = 72 + 4 * (k & 3); k += 1
            o = c.O + dt * 16 + 8 * t
            for r in range(8): a(f"v_mul_f32 v{o+r}, v{o+r}, v{VL}")
            for r in range(4): a(f"v_cvt_pk_bf16_f32 v{T+r}, v{o+2*r}, v{o+2*r+1}")
            a(f"buffer_store_dwordx4 {vr(T)}, v15, s[8:11], {'s37' if dt >= 2 else '0'} offen offset:{((dt&1)*2+t)*1024}")
    a("""s_sub_u32 s21, 15, s21
    s_sub_u32 s50, s50, 1
    s_cmp_lg_u32 s50, 0
    s_cbranch_scc1 atB_outer
    s_endpgm""")
    for Ls, Lr, par in slow: slow_path(a, c, Ls, Lr, par)
    a.label("at_A")
    c = cfgA(); sq = Seq(a)
    a(f"""s_sub_u32 s21, s2, 256
    s_lshr_b32 s21, s21, 5
    s_lshl_b32 s22, s21, 8
    s_lshl_b32 s36, s27, 6
    s_add_u32 s22, s22, s36
    v_and_b32 v4, 31, v1
    v_add_u32 v9, s22, v4
    s_lshl_b32 s36, s20, 11
    v_add_u32 v5, s36, v9
    v_mul_u32_u24 v5, 40, v5
    v_add_u32 v5, {WS_QA}, v5
    v_lshl_add_u32 v6, v8, 4, v5
    v_cmp_eq_u32 vcc, 0, v8""")
    for qs in range(2):
        q = QF + qs * 8
        a(f"""buffer_load_dwordx2 {vr(q,2)}, v6, s[8:11], 0 offen offset:{qs*1280}
        buffer_load_dwordx2 {vr(q+2,2)}, v6, s[8:11], 0 offen offset:{qs*1280+8}
        buffer_load_dwordx2 {vr(q+4,2)}, v5, s[8:11], 0 offen offset:{qs*1280+32}
        v_mov_b32 v{q+6}, 0
        v_mov_b32 v{q+7}, 0""")
    a("s_waitcnt vmcnt(0)")
    for qs in range(2):
        q = QF + qs * 8
        a(f"v_cndmask_b32 v{q+4}, 0, v{q+4}, vcc\nv_cndmask_b32 v{q+5}, 0, v{q+5}, vcc")
    rd_addr_256(a)
    a(f"""v_and_b32 v4, 31, v1
    v_mul_u32_u24 v4, 40, v4
    v_lshl_add_u32 v{VRB}, v8, 4, v4
    v_add_u32 v{VRB+1}, 32, v4
    v_lshlrev_b32 v4, 2, v1
    v_mov_b32 v5, 0x3f803f80""")
    for b in range(4):
        a(f"ds_write_b32 v4, v5 offset:{b*16384 + 8192 + 20*256}")
    for i in range(3):
        Lv, Ld = a.uniq("slv"), a.uniq("sld")
        a(f"""s_mul_i32 s36, s27, 3
        s_add_u32 s36, s36, {i}
        s_cmp_ge_u32 s36, 10
        s_cselect_b32 s37, 10, 0
        s_sub_u32 s36, s36, s37
        s_mov_b32 s{40+i}, 0
        s_cmp_ge_u32 s36, 5
        s_cbranch_scc1 {Lv}
        s_lshl_b32 s{46+i}, s36, 10
        s_mov_b32 s{43+i}, 5120
        s_mul_i32 s37, s20, 81920
        s_add_u32 s37, s37, s{46+i}
        s_add_u32 s37, s37, {WS_KA}
        v_lshl_add_u32 v{VDA+i}, v1, 4, s37
        s_branch {Ld}""")
        a.label(Lv)
        a(f"""s_sub_u32 s36, s36, 5
        s_lshl_b32 s{46+i}, s36, 10
        s_add_u32 s{46+i}, s{46+i}, 8192
        s_mov_b32 s{43+i}, 256
        s_lshl_b32 s36, s36, 2
        v_lshrrev_b32 v4, 4, v1
        v_add_u32 v4, s36, v4
        v_and_b32 v5, 15, v4
        v_and_b32 v6, 15, v1
        v_xor_b32 v5, v5, v6
        s_mul_i32 s37, s20, 20
        v_add_u32 v4, s37, v4
        v_lshlrev_b32 v4, 12, v4
        v_lshl_add_u32 v4, v5, 4, v4
        v_add_u32 v{VDA+i}, {WS_VTA}, v4""")
        a.label(Ld)
    init_state(a, c)
    def loadsA():
        for i in range(3):
            a(f"""s_add_u32 m0, s{46+i}, s49
            s_nop 0
            buffer_load_dwordx4 v{VDA+i}, s[8:11], s{40+i} offen lds
            s_add_u32 s{40+i}, s{40+i}, s{43+i}""")
        a("s_add_u32 s49, s49, 16384\ns_and_b32 s49, s49, 0xffff")
    def bump(regs):
        return "\n".join(f"v_add_u32 v{r}, 0x4000, v{r}\nv_and_b32 v{r}, 0xffff, v{r}" for r in regs)
    a("s_mov_b32 s49, 0")
    loadsA(); loadsA()
    slow = []
    a("s_mov_b32 s21, 15\ns_waitcnt vmcnt(3) lgkmcnt(0)\ns_barrier")
    prologue_qk(a, c, sq, slow, False)
    kb = [VRB, VRB + 1]; vbs = list(range(VRA, VRA + 8))
    a.label("atA_loop")
    for st in range(3):
        iteration(a, c, sq, slow, st & 1, 0, st + 1, 0, st, True, False)
    a("s_waitcnt vmcnt(0)\ns_barrier\ns_cmp_eq_u32 s21, 1\ns_cbranch_scc1 atA_nold")
    loadsA()
    a.label("atA_nold")
    a(bump(kb))
    iteration(a, c, sq, slow, 1, 0, 0, 0, 3, True, False, mid=bump(vbs))
    a("s_sub_u32 s21, s21, 1\ns_cmp_lg_u32 s21, 0\ns_cbranch_scc1 atA_loop")
    for st in range(3):
        iteration(a, c, sq, slow, st & 1, 0, st + 1, 0, st, True, False)
    iteration(a, c, sq, slow, 1, 0, 0, 0, 3, False, False)
    a(f"""s_nop 7
    s_nop 7
    v_mul_u32_u24 v5, 1280, v9
    s_mul_i32 s36, s20, 40
    s_add_u32 s36, s36, {WS_OA}
    v_lshl_add_u32 v5, v8, 3, v5
    v_add_u32 v5, s36, v5""")
    for qs in range(2):
        o = c.O + qs * 16
        a(f"""v_mov_b32 v6, v{o+8}
        v_mov_b32 v7, v{o+8}
        s_nop 1
        v_permlane32_swap_b32 v6, v7
        v_rcp_f32 v7, v7
        s_nop 0""")
        for r in range(12): a(f"v_mul_f32 v{o+r}, v{o+r}, v7")
        for j in range(3):
            T = 72 + 2 * (qs * 3 + j)
            a(f"v_cvt_pk_bf16_f32 v{T}, v{o+4*j}, v{o+4*j+1}\nv_cvt_pk_bf16_f32 v{T+1}, v{o+4*j+2}, v{o+4*j+3}")
            if j == 2: a("s_mov_b32 exec_hi, 0")
            a(f"buffer_store_dwordx2 {vr(T,2)}, v5, s[8:11], 0 offen offset:{j*16}")
            if j == 2: a("s_mov_b32 exec_hi, -1")
        if qs == 0: a(f"v_add_u32 v5, {32*1280}, v5")
    a("s_endpgm")
    for Ls, Lr, par in slow: slow_path(a, c, Ls, Lr, par)
    a.label("at_end")
    a("s_endpgm")
    return kernel_desc(name, 256)
```

```python
from common import *
import os

VXG, VWG, VXR, VWR = 10, 14, 18, 22
FR = 64
ACC = 128

def acc(i, j):
    return ACC + (i * 2 + j) * 16

XSTEP = [128]
def issue_loads(a, buf):
    for i in range(4):
        a(f"""s_add_u32 m0, s26, {buf*32768 + i*1024}
        s_nop 0
        buffer_load_dwordx4 v{VXG+i}, s[8:11], s23 offen lds""")
    for i in range(4):
        a(f"""s_add_u32 m0, s26, {buf*32768 + 16384 + i*1024}
        s_nop 0
        buffer_load_dwordx4 v{VWG+i}, s[12:15], s24 offen lds""")
    a(f"""s_add_u32 s23, s23, {XSTEP[0]}
    s_add_u32 s24, s24, s25""")

def read_frags(a, buf, kk, st, perm=False):
    b = FR + 16 * st
    for mi in range(2):
        a(f"ds_read_b128 {vr(b+4*mi)}, v{VXR+kk} offset:{buf*32768 + mi*4096}")
    for ni in range(2):
        for u in range(2):
            a(f"ds_read_b64_tr_b16 {vr(b+8+4*ni+2*u,2)}, v{VWR+ni} offset:{buf*32768 + 16384 + kk*4096 + u*(2048 if perm else 1024)}")

def compute(a, buf, orient, perm=False):
    read_frags(a, buf, 0, 0, perm)
    for kk in range(4):
        st = kk & 1
        if kk < 3:
            read_frags(a, buf, kk + 1, st ^ 1, perm)
            a("s_waitcnt lgkmcnt(6)")
        else:
            a("s_waitcnt lgkmcnt(0)")
        b = FR + 16 * st
        for i in range(2):
            for j in range(2):
                if orient == 'T':
                    A, B = b + 8 + 4 * i, b + 4 * j
                else:
                    A, B = b + 4 * i, b + 8 + 4 * j
                d = acc(i, j)
                a(f"v_mfma_f32_32x32x16_bf16 {vr(d,16)}, {vr(A)}, {vr(B)}, {vr(d,16)}")

def prefetch_setup(a):
    a(f"""v_and_b32 v27, 31, v1
    s_lshl_b32 s36, s27, 5
    v_add_u32 v28, s36, v27
    s_add_u32 s36, s36, s30
    v_add_u32 v27, s36, v27
    v_mul_lo_u32 v27, v27, s20
    v_lshlrev_b32 v29, 7, v8
    v_add3_u32 v27, v27, v29, s41
    v_lshrrev_b32 v29, 1, v28
    v_mul_lo_u32 v29, v29, s21
    v_and_b32 v28, 1, v28
    v_lshl_add_u32 v29, v28, 7, v29
    v_mul_lo_u32 v28, v8, s25
    s_lshl_b32 s37, s31, 1
    s_add_u32 s37, s37, s25
    v_add3_u32 v28, v28, v29, s37""")

PF = int(os.environ.get('GPF', '0'))
def mainloop(a, orient, perm=False):
    issue_loads(a, 0)
    if PF: prefetch_setup(a)
    L, Lskip = a.uniq("gl"), a.uniq("gs")
    a.label(L)
    a("s_waitcnt vmcnt(0)\ns_barrier")
    issue_loads(a, 1)
    if PF:
        a("""buffer_load_dword v29, v27, s[8:11], s23 offen offset:128
        buffer_load_dword v29, v28, s[12:15], s24 offen""")
    compute(a, 0, orient, perm)
    a(f"s_waitcnt vmcnt({2 if PF else 0})\ns_barrier")
    a(f"s_sub_u32 s22, s22, 1\ns_cmp_eq_u32 s22, 0\ns_cbranch_scc1 {Lskip}")
    issue_loads(a, 0)
    a.label(Lskip)
    compute(a, 1, orient, perm)
    a(f"s_cmp_lg_u32 s22, 0\ns_cbranch_scc1 {L}")
    a("s_nop 15")

def setup(a, perm=False):
    a("""v_and_b32 v1, 63, v0
    v_lshrrev_b32 v2, 6, v0
    s_nop 0
    v_readfirstlane_b32 s27, v2
    s_lshl_b32 s26, s27, 12
    s_lshr_b32 s28, s27, 1
    s_and_b32 s29, s27, 1
    v_lshrrev_b32 v2, 3, v1
    v_and_b32 v3, 7, v1
    v_lshrrev_b32 v4, 4, v1
    v_and_b32 v5, 15, v1""")
    for i in range(4):
        a(f"""s_lshl_b32 s36, s27, 5
        s_add_u32 s36, s36, {i*8}
        s_add_u32 s36, s36, s30
        v_add_u32 v6, s36, v2
        v_add_u32 v7, {(i&1)*4}, v4
        v_xor_b32 v7, v7, v3""")
        if perm:
            a(f"""v_lshrrev_b32 v9, 5, v6
            v_lshlrev_b32 v9, 18, v9
            v_and_b32 v6, 31, v6
            v_lshl_add_u32 v9, v6, 5, v9
            v_lshrrev_b32 v6, 1, v7
            v_lshl_add_u32 v9, v6, 10, v9
            v_and_b32 v7, 1, v7
            v_lshl_add_u32 v9, v7, 4, v9
            v_add_u32 v{VXG+i}, s41, v9""")
        else:
            a(f"""v_mul_lo_u32 v6, v6, s20
            v_lshlrev_b32 v7, 4, v7
            v_add3_u32 v{VXG+i}, v6, v7, s41""")
    a("""v_lshlrev_b32 v7, 2, v4
    v_xor_b32 v7, v7, v5
    v_lshlrev_b32 v7, 4, v7
    s_lshl_b32 s37, s31, 1""")
    for i in range(4):
        a(f"""s_lshl_b32 s36, s27, 4
        s_add_u32 s36, s36, {i*4}
        v_add_u32 v6, s36, v4
        v_mul_lo_u32 v6, v6, s21
        v_add3_u32 v{VWG+i}, v6, v7, s37""")
    a("""v_and_b32 v6, 31, v1
    v_lshrrev_b32 v8, 5, v1
    s_lshl_b32 s36, s28, 6
    v_add_u32 v6, s36, v6
    v_bfe_u32 v7, v6, 1, 3
    v_xor_b32 v7, v7, v8
    v_lshlrev_b32 v6, 7, v6""")
    for kk in range(4):
        a(f"""v_xor_b32 v9, {2*kk}, v7
        v_lshl_add_u32 v{VXR+kk}, v9, 4, v6""")
    a(f"""v_bfe_u32 v6, v1, 2, 2
    v_and_b32 v7, 3, v1
    v_bfe_u32 v9, v1, 4, 1
    v_lshlrev_b32 v24, {2 if perm else 3}, v8
    v_add_u32 v24, v24, v6
    v_lshlrev_b32 v24, 8, v24
    v_lshrrev_b32 v25, 1, v7
    v_lshl_add_u32 v25, v9, 1, v25
    s_lshl_b32 s36, s29, 3
    v_add_u32 v25, s36, v25
    v_lshlrev_b32 v26, 2, v6
    v_xor_b32 v25, v25, v26
    v_and_b32 v7, 1, v7
    v_lshl_add_u32 v24, v7, 3, v24""")
    for ni in range(2):
        a(f"""v_xor_b32 v26, {4*ni}, v25
        v_lshl_add_u32 v{VWR+ni}, v26, 4, v24""")
    for r in range(64):
        a(f"v_mov_b32 v{ACC+r}, 0")

def cvt8(a, dst, src, scale=False):
    if scale:
        for r in range(8):
            a(f"v_mul_f32 v{src+r}, s40, v{src+r}")
    for r in range(4):
        a(f"v_cvt_pk_bf16_f32 v{dst+r}, v{src+2*r}, v{src+2*r+1}")

def epi_rowmajor_perm(a, ldo, scale):
    a(f"""v_and_b32 v2, 31, v1
    s_lshl_b32 s36, s28, 6
    s_add_u32 s36, s36, s30
    v_add_u32 v2, s36, v2
    v_mul_u32_u24 v2, {ldo}, v2
    s_lshl_b32 s36, s29, 7
    s_add_u32 s36, s36, s33
    v_lshlrev_b32 v3, 4, v8
    v_add3_u32 v2, v2, v3, s36
    v_add_u32 v3, {32*ldo}, v2""")
    k = 0
    for ni in range(2):
        for mi in range(2):
            for t in range(2):
                T = 24 + 4 * (k & 3); k += 1
                cvt8(a, T, acc(ni, mi) + 8 * t, scale)
                a(f"buffer_store_dwordx4 {vr(T)}, v{2+mi}, s[16:19], 0 offen offset:{ni*64+t*32}")

def epi_colmajor_perm(a):
    a(f"""v_and_b32 v2, 31, v1
    s_lshl_b32 s36, s29, 6
    v_add_u32 v2, s36, v2
    v_lshlrev_b32 v2, 12, v2
    s_lshl_b32 s36, s28, 6
    s_add_u32 s36, s36, s30
    s_lshl_b32 s36, s36, 1
    s_add_u32 s36, s36, s33
    v_lshlrev_b32 v3, 4, v8
    v_add3_u32 v2, v2, v3, s36
    v_add_u32 v3, {32*4096}, v2""")
    k = 0
    for mi in range(2):
        for ni in range(2):
            for t in range(2):
                T = 24 + 4 * (k & 3); k += 1
                cvt8(a, T, acc(mi, ni) + 8 * t)
                a(f"buffer_store_dwordx4 {vr(T)}, v{2+ni}, s[16:19], 0 offen offset:{mi*64+t*32}")

def epi_compact(a):
    a(f"""v_and_b32 v2, 31, v1
    s_lshl_b32 s36, s28, 6
    s_add_u32 s36, s36, s30
    v_add_u32 v2, s36, v2
    v_mul_u32_u24 v2, 40, v2
    v_add_u32 v2, s33, v2
    s_lshl_b32 s36, s29, 4
    s_add_u32 s36, s36, s35
    v_add_u32 v3, s36, v8""")
    k = 0
    for ni in range(2):
        for j in range(4):
            a(f"""v_add_u32 v4, {ni*8+2*j}, v3
            v_mul_u32_u24 v5, 0xcccd, v4
            v_lshrrev_b32 v5, 18, v5
            v_mul_u32_u24 v6, 5, v5
            v_sub_u32 v6, v4, v6
            v_mul_u32_u24 v5, 0x14000, v5
            v_lshl_add_u32 v5, v6, 3, v5
            v_add_u32 v{40+k}, v5, v2""")
            for mi in range(2):
                s = acc(ni, mi) + 4 * j
                T = 24 + 2 * ((2 * k + mi) & 7)
                for r in range(4):
                    a(f"v_mul_f32 v{s+r}, s40, v{s+r}")
                a(f"""v_cvt_pk_bf16_f32 v{T}, v{s}, v{s+1}
                v_cvt_pk_bf16_f32 v{T+1}, v{s+2}, v{s+3}
                buffer_store_dwordx2 {vr(T,2)}, v{40+k}, s[16:19], 0 offen offset:{mi*1280}""")
            k += 1

def epi_out(a, fp32):
    esz = 4 if fp32 else 2
    a(f"""v_and_b32 v2, 31, v1
    s_lshl_b32 s36, s28, 6
    s_add_u32 s36, s36, s30
    v_add_u32 v2, s36, v2
    v_mul_u32_u24 v2, 2560, v2
    s_mul_i32 s36, s29, {64*esz}
    s_add_u32 s36, s36, s33
    v_mul_u32_u24 v3, {4*esz}, v8
    v_add3_u32 v2, v2, v3, s36
    v_add_u32 v3, {32*2560}, v2""")
    k = 0
    for ni in range(2):
        for mi in range(2):
            for j in range(4):
                s = acc(ni, mi) + 4 * j
                off = (ni * 32 + 8 * j) * esz
                if fp32:
                    a(f"buffer_store_dwordx4 {vr(s)}, v{2+mi}, s[16:19], 0 offen offset:{off}")
                else:
                    T = 24 + 2 * (k & 7); k += 1
                    a(f"""v_cvt_pk_bf16_f32 v{T}, v{s}, v{s+1}
                    v_cvt_pk_bf16_f32 v{T+1}, v{s+2}, v{s+3}
                    buffer_store_dwordx2 {vr(T,2)}, v{2+mi}, s[16:19], 0 offen offset:{off}""")


def load_ptr(a, dst, slot):
    a(f"s_load_dwordx2 s[{dst}:{dst+1}], s[0:1], {slot*8}")

def tile_decode(a, base):
    a(f"""s_sub_u32 s35, s2, {base}
    s_and_b32 s30, s35, 15
    s_lshl_b32 s30, s30, 7
    s_lshr_b32 s35, s35, 4
    s_lshl_b32 s31, s35, 7""")

def gen_k1(a):
    name = "proj_kernel"
    kernel_header(a, name)
    cB = f32(128 ** -0.5 * LOG2E); cA = f32(20 ** -0.5 * LOG2E)
    a("""s_cmp_ge_u32 s2, 1776
    s_cbranch_scc1 k1_end
    s_load_dwordx2 s[42:43], s[0:1], 88
    s_mov_b32 s23, 0
    s_mov_b32 s24, 0
    s_mov_b32 s41, 0
    s_mov_b32 s40, 1.0
    s_cmp_ge_u32 s2, 240
    s_cbranch_scc1 k1_p1""")
    load_ptr(a, 4, 0); load_ptr(a, 6, 1)
    tile_decode(a, 0)
    a(f"""s_mov_b32 s20, 1280
    s_mov_b32 s21, 3840
    s_mov_b32 s25, {64*3840}
    s_mov_b32 s22, 5
    s_waitcnt lgkmcnt(0)""")
    srd(a, 8, 4, 2048*640*2); srd(a, 12, 6, 640*1920*2); srd(a, 16, 42, WS_SIZE)
    a(f"""s_cmp_ge_u32 s35, 10
    s_cbranch_scc1 k1_a_v
    s_mov_b32 s32, 1
    s_mov_b32 s33, {WS_KA}
    s_sub_u32 s35, s35, 5
    s_cmp_ge_i32 s35, 0
    s_cbranch_scc1 k1_a_k
    s_add_u32 s35, s35, 5
    s_mov_b32 s33, {WS_QA}
    s_mov_b32 s40, {cA}""")
    a.label("k1_a_k")
    a("s_lshl_b32 s35, s35, 5\ns_branch k1_T")
    a.label("k1_a_v")
    a(f"""s_sub_u32 s35, s35, 10
    s_lshl_b32 s33, s35, 19
    s_add_u32 s33, s33, {WS_VTA}
    s_branch k1_N""")
    a.label("k1_p1")
    a("s_cmp_ge_u32 s2, 752\ns_cbranch_scc1 k1_p2")
    load_ptr(a, 4, 3); load_ptr(a, 6, 5)
    tile_decode(a, 240)
    a(f"""s_mov_b32 s20, 1280
    s_mov_b32 s21, 8192
    s_mov_b32 s25, {64*8192}
    s_mov_b32 s22, 5
    s_mov_b32 s40, {cB}
    s_mov_b32 s32, 0
    s_lshl_b32 s33, s31, 1
    s_add_u32 s33, s33, {WS_QB}
    s_waitcnt lgkmcnt(0)""")
    srd(a, 8, 4, 2048*640*2); srd(a, 12, 6, 640*4096*2); srd(a, 16, 42, WS_SIZE)
    a("s_branch k1_T")
    a.label("k1_p2")
    load_ptr(a, 4, 4)
    a(f"""s_mov_b32 s20, 1024
    s_mov_b32 s21, 8192
    s_mov_b32 s25, {64*8192}
    s_mov_b32 s22, 4
    s_cmp_ge_u32 s2, 1264
    s_cbranch_scc1 k1_p3""")
    load_ptr(a, 6, 6)
    tile_decode(a, 752)
    a(f"""s_mov_b32 s32, 0
    s_lshl_b32 s33, s31, 1
    s_add_u32 s33, s33, {WS_KB}
    s_waitcnt lgkmcnt(0)""")
    srd(a, 8, 4, 2048*512*2); srd(a, 12, 6, 512*4096*2); srd(a, 16, 42, WS_SIZE)
    a("s_branch k1_T")
    a.label("k1_p3")
    load_ptr(a, 6, 7)
    tile_decode(a, 1264)
    a(f"""s_lshl_b32 s33, s31, 12
    s_add_u32 s33, s33, {WS_VTB}
    s_waitcnt lgkmcnt(0)""")
    srd(a, 8, 4, 2048*512*2); srd(a, 12, 6, 512*4096*2); srd(a, 16, 42, WS_SIZE)
    a.label("k1_N")
    setup(a)
    mainloop(a, 'N')
    epi_colmajor_perm(a)
    a("s_endpgm")
    a.label("k1_T")
    setup(a)
    mainloop(a, 'T')
    a("s_cmp_eq_u32 s32, 1\ns_cbranch_scc1 k1_compact")
    epi_rowmajor_perm(a, 8192, True)
    a("s_endpgm")
    a.label("k1_compact")
    epi_compact(a)
    a.label("k1_end")
    a("s_endpgm")
    return kernel_desc(name, 192)

def gen_k3(a):
    name = "oproj_kernel"
    kernel_header(a, name)
    a("""s_cmp_ge_u32 s2, 400
    s_cbranch_scc1 k3_end
    s_load_dwordx2 s[42:43], s[0:1], 88
    s_mov_b32 s21, 1280
    s_mov_b32 s25, 81920
    s_mov_b32 s23, 0
    s_cmp_ge_u32 s2, 320
    s_cbranch_scc1 k3_p1""")
    load_ptr(a, 6, 8)
    a(f"""s_mul_hi_u32 s44, s2, {(1<<32)//80 + 1}
    s_mul_i32 s45, s44, 80
    s_sub_u32 s35, s2, s45
    s_and_b32 s30, s35, 15
    s_lshl_b32 s30, s30, 7
    s_lshr_b32 s35, s35, 4
    s_lshl_b32 s31, s35, 7
    s_mov_b32 s20, 8192
    s_mov_b32 s22, 8
    s_lshl_b32 s41, s44, 16
    s_add_u32 s41, s41, {WS_CTX}
    s_mul_i32 s24, s44, {1024*1280}
    s_mul_i32 s33, s44, {2048*640*4}
    s_add_u32 s33, s33, {WS_PART}
    s_lshl_b32 s45, s31, 2
    s_add_u32 s33, s33, s45
    s_waitcnt lgkmcnt(0)""")
    srd(a, 8, 42, WS_SIZE); srd(a, 12, 6, 4096*640*2); srd(a, 16, 42, WS_SIZE)
    setup(a, True)
    XSTEP[0] = 4096
    mainloop(a, 'T', True)
    XSTEP[0] = 128
    epi_out(a, True)
    a("s_endpgm")
    a.label("k3_p1")
    load_ptr(a, 6, 2); load_ptr(a, 4, 9)
    tile_decode(a, 320)
    a(f"""s_mov_b32 s20, 1280
    s_mov_b32 s22, 5
    s_mov_b32 s41, {WS_OA}
    s_mov_b32 s24, 0
    s_lshl_b32 s33, s31, 1
    s_waitcnt lgkmcnt(0)""")
    srd(a, 8, 42, WS_SIZE); srd(a, 12, 6, 640*640*2); srd(a, 16, 4, 2048*1280*2)
    setup(a)
    mainloop(a, 'T')
    epi_out(a, False)
    a.label("k3_end")
    a("s_endpgm")
    return kernel_desc(name, 192)

def gen_k4(a):
    name = "reduce_kernel"
    kernel_header(a, name)
    a(f"""s_cmp_ge_u32 s2, 640
    s_cbranch_scc1 k4_end
    s_load_dwordx2 s[4:5], s[0:1], 72
    s_load_dwordx2 s[6:7], s[0:1], 88
    s_lshl_b32 s3, s2, 8
    v_add_u32 v1, s3, v0
    v_lshlrev_b32 v2, 5, v1
    s_mov_b32 s20, {(1<<32)//80 + 1}
    v_mul_hi_u32 v3, v1, s20
    v_mul_u32_u24 v4, 80, v3
    v_sub_u32 v4, v1, v4
    v_mul_u32_u24 v3, 2560, v3
    v_lshl_add_u32 v3, v4, 4, v3
    s_waitcnt lgkmcnt(0)""")
    srd(a, 8, 4, 2048*1280*2); srd(a, 12, 6, WS_SIZE)
    for ks in range(4):
        a(f"""s_mov_b32 s{20+ks}, {WS_PART + ks*2048*640*4}
        buffer_load_dwordx4 {vr(8+8*ks)}, v2, s[12:15], s{20+ks} offen
        buffer_load_dwordx4 {vr(12+8*ks)}, v2, s[12:15], s{20+ks} offen offset:16""")
    a("s_waitcnt vmcnt(0)")
    for r in range(8):
        a(f"""v_add_f32 v{8+r}, v{8+r}, v{16+r}
        v_add_f32 v{24+r}, v{24+r}, v{32+r}""")
    for r in range(8):
        a(f"v_add_f32 v{8+r}, v{8+r}, v{24+r}")
    for r in range(4):
        a(f"v_cvt_pk_bf16_f32 v{40+r}, v{8+2*r}, v{9+2*r}")
    a("buffer_store_dwordx4 v[40:43], v3, s[8:11], 0 offen offset:1280")
    a.label("k4_end")
    a("s_endpgm")
    return kernel_desc(name, 48)
```

```python
from common import *
import os
TS = int(os.environ.get('TS', '0'))
def stamp(a, i):
    if TS: a(f"s_memtime s[50:51]\ns_waitcnt lgkmcnt(0)\ns_mov_b32 s{60+i}, s50")
def stamp_out(a, n):
    if not TS: return
    a("s_waitcnt vmcnt(0)")
    stamp(a, n)
    L = a.uniq('tso')
    a(f"""s_memrealtime s[54:55]
    s_waitcnt lgkmcnt(0)
    v_mov_b32 v4, s70
    v_mov_b32 v5, s54
    s_lshl_b32 s50, s2, 3
    s_add_u32 s50, s50, {200*MB}
    v_mov_b32 v3, s50
    buffer_store_dwordx2 v[4:5], v3, s[16:19], 0 offen""")
    a(f"s_cmp_lg_u32 s2, {TS-1}\ns_cbranch_scc1 {L}\ns_cmp_lg_u32 s27, 0\ns_cbranch_scc1 {L}\ns_load_dwordx2 s[52:53], s[0:1], 80\ns_waitcnt lgkmcnt(0)")
    srd(a, 56, 52, 256)
    for i in range(n + 1):
        a(f"s_sub_u32 s50, s{60+i}, s60\nv_mov_b32 v2, s50\nv_mov_b32 v3, {4*i}\nbuffer_store_dword v2, v3, s[56:59], 0 offen")
    a.label(L)
VXG, VWG = 10, 14
VXR, VWR = 18, 26
FR = 64
ACC = 128

def acc(mi, ni):
    return ACC + (ni * 4 + mi) * 16

def issue_loads(a, buf):
    for i in range(4):
        a(f"""s_add_u32 m0, s26, {buf*65536 + i*1024}
        s_nop 0
        buffer_load_dwordx4 v{VXG+i}, s[8:11], s23 offen lds""")
    for i in range(4):
        a(f"""s_add_u32 m0, s26, {buf*65536 + 32768 + i*1024}
        s_nop 0
        buffer_load_dwordx4 v{VWG+i}, s[12:15], s24 offen lds""")
    a("""s_add_u32 s23, s23, 128
    s_add_u32 s24, s24, s25""")

def read_frags(a, buf, kk, st, perm):
    b = FR + 24 * st
    for ni in range(2):
        for u in range(2):
            a(f"ds_read_b64_tr_b16 {vr(b+16+4*ni+2*u,2)}, v{VWR+2*buf+ni} offset:{kk*4096 + u*(2048 if perm else 1024)}")
    for mi in range(4):
        a(f"ds_read_b128 {vr(b+4*mi)}, v{VXR+4*buf+kk} offset:{mi*4096}")

def compute(a, buf, orient, perm):
    read_frags(a, buf, 0, 0, perm)
    for kk in range(4):
        st = kk & 1
        if kk < 3:
            read_frags(a, buf, kk + 1, st ^ 1, perm)
        b = FR + 24 * st
        for mi in range(4):
            a(f"s_waitcnt lgkmcnt({(8 if kk < 3 else 0) + 3 - mi})")
            for ni in range(2):
                X, W = b + 4 * mi, b + 16 + 4 * ni
                A, B = (W, X) if orient == 'T' else (X, W)
                d = acc(mi, ni)
                a(f"v_mfma_f32_32x32x16_bf16 {vr(d,16)}, {vr(A)}, {vr(B)}, {vr(d,16)}")

def mainloop(a, orient, perm=False):
    stamp(a, 1)
    issue_loads(a, 0)
    L, Lskip = a.uniq("gl"), a.uniq("gs")
    if TS:
        a("s_waitcnt vmcnt(0)\ns_barrier"); stamp(a, 2)
    a.label(L)
    a("s_waitcnt vmcnt(0)\ns_barrier")
    issue_loads(a, 1)
    compute(a, 0, orient, perm)
    a("s_waitcnt vmcnt(0)\ns_barrier")
    a(f"s_sub_u32 s22, s22, 1\ns_cmp_eq_u32 s22, 0\ns_cbranch_scc1 {Lskip}")
    issue_loads(a, 0)
    a.label(Lskip)
    compute(a, 1, orient, perm)
    a(f"s_cmp_lg_u32 s22, 0\ns_cbranch_scc1 {L}")
    a("s_nop 15")
    stamp(a, 3)

def setup(a, perm=False):
    a("""v_and_b32 v1, 63, v0
    v_lshrrev_b32 v2, 6, v0
    s_nop 0
    v_readfirstlane_b32 s27, v2
    s_lshl_b32 s26, s27, 12
    s_lshr_b32 s28, s27, 2
    s_and_b32 s29, s27, 3
    v_lshrrev_b32 v2, 3, v1
    v_and_b32 v3, 7, v1
    v_lshrrev_b32 v4, 4, v1
    v_and_b32 v5, 15, v1""")
    for i in range(4):
        a(f"""s_lshl_b32 s36, s27, 5
        s_add_u32 s36, s36, {i*8}
        s_add_u32 s36, s36, s30
        v_add_u32 v6, s36, v2
        v_mul_lo_u32 v6, v6, s20
        v_add_u32 v7, {(i&1)*4}, v4
        v_xor_b32 v7, v7, v3
        v_lshlrev_b32 v7, 4, v7
        v_add3_u32 v{VXG+i}, v6, v7, s41""")
    a("""v_lshlrev_b32 v7, 2, v4
    v_xor_b32 v7, v7, v5
    v_lshlrev_b32 v7, 4, v7
    s_lshl_b32 s37, s28, 7
    s_add_u32 s37, s37, s31
    s_lshl_b32 s37, s37, 1""")
    for i in range(4):
        a(f"""s_lshl_b32 s36, s29, 4
        s_add_u32 s36, s36, {i*4}
        v_add_u32 v6, s36, v4
        v_mul_lo_u32 v6, v6, s21
        v_add3_u32 v{VWG+i}, v6, v7, s37""")
    a("""v_and_b32 v6, 31, v1
    v_lshrrev_b32 v8, 5, v1
    v_bfe_u32 v7, v6, 1, 3
    v_xor_b32 v7, v7, v8
    v_lshlrev_b32 v6, 7, v6
    s_lshl_b32 s36, s28, 14
    v_add_u32 v6, s36, v6""")
    for kk in range(4):
        a(f"""v_xor_b32 v9, {2*kk}, v7
        v_lshl_add_u32 v{VXR+kk}, v9, 4, v6
        v_add_u32 v{VXR+4+kk}, 0x10000, v{VXR+kk}""")
    a(f"""v_bfe_u32 v6, v1, 2, 2
    v_and_b32 v7, 3, v1
    v_bfe_u32 v9, v1, 4, 1
    v_lshlrev_b32 v30, {2 if perm else 3}, v8
    v_add_u32 v30, v30, v6
    v_lshlrev_b32 v30, 8, v30
    v_lshrrev_b32 v31, 1, v7
    v_lshl_add_u32 v31, v9, 1, v31
    s_and_b32 s36, s29, 1
    s_lshl_b32 s36, s36, 3
    v_add_u32 v31, s36, v31
    v_lshlrev_b32 v32, 2, v6
    v_xor_b32 v31, v31, v32
    v_and_b32 v7, 1, v7
    v_lshl_add_u32 v30, v7, 3, v30
    s_lshr_b32 s36, s29, 1
    s_lshl_b32 s36, s36, 14
    s_add_u32 s36, s36, 32768
    v_add_u32 v30, s36, v30""")
    for ni in range(2):
        a(f"""v_xor_b32 v32, {4*ni}, v31
        v_lshl_add_u32 v{VWR+ni}, v32, 4, v30
        v_add_u32 v{VWR+2+ni}, 0x10000, v{VWR+ni}""")
    for r in range(128):
        a(f"v_mov_b32 v{ACC+r}, 0")

def cvt8(a, dst, src, scale=False):
    if scale:
        for r in range(8):
            a(f"v_mul_f32 v{src+r}, s40, v{src+r}")
    for r in range(4):
        a(f"v_cvt_pk_bf16_f32 v{dst+r}, v{src+2*r}, v{src+2*r+1}")

def epi_rowmajor_perm(a, ldo, scale):
    a(f"""v_and_b32 v2, 31, v1
    v_lshlrev_b32 v2, 5, v2
    v_lshl_add_u32 v2, v8, 4, v2
    s_lshl_b32 s36, s28, 7
    s_add_u32 s36, s36, s30
    s_mul_i32 s36, s36, {ldo}
    s_add_u32 s36, s36, s33
    s_lshl_b32 s37, s29, 12
    s_add_u32 s36, s36, s37
    v_add_u32 v2, s36, v2
    v_add_u32 v3, {32*ldo}, v2
    v_add_u32 v4, {64*ldo}, v2
    v_add_u32 v5, {96*ldo}, v2""")
    k = 0
    for mi in range(4):
        for ni in range(2):
            for t in range(2):
                T = 32 + 4 * (k & 7); k += 1
                cvt8(a, T, acc(mi, ni) + 8 * t, scale)
                a(f"buffer_store_dwordx4 {vr(T)}, v{2+mi}, s[16:19], 0 offen offset:{(ni*2+t)*1024}")

def epi_colmajor_blk(a):
    a(f"""v_and_b32 v2, 31, v1
    v_lshlrev_b32 v2, 5, v2
    v_lshl_add_u32 v2, v8, 4, v2
    s_lshl_b32 s36, s29, 18
    s_add_u32 s36, s36, s33
    s_lshl_b32 s37, s28, 7
    s_add_u32 s37, s37, s30
    s_lshl_b32 s37, s37, 6
    s_add_u32 s36, s36, s37
    v_add_u32 v2, s36, v2
    v_add_u32 v3, 4096, v2
    v_add_u32 v4, {32*4096}, v2
    v_add_u32 v5, {32*4096+4096}, v2""")
    k = 0
    for ni in range(2):
        for mi in range(4):
            for t in range(2):
                T = 32 + 4 * (k & 7); k += 1
                cvt8(a, T, acc(mi, ni) + 8 * t)
                a(f"buffer_store_dwordx4 {vr(T)}, v{2+ni*2+(mi>>1)}, s[16:19], 0 offen offset:{((mi&1)*2+t)*1024}")

def epi_colmajor_perm(a):
    a(f"""v_and_b32 v2, 31, v1
    s_lshl_b32 s36, s29, 6
    v_add_u32 v2, s36, v2
    v_lshlrev_b32 v2, 12, v2
    s_lshl_b32 s36, s28, 7
    s_add_u32 s36, s36, s30
    s_lshl_b32 s36, s36, 1
    s_add_u32 s36, s36, s33
    v_lshlrev_b32 v3, 4, v8
    v_add3_u32 v2, v2, v3, s36
    v_add_u32 v3, {32*4096}, v2""")
    k = 0
    for ni in range(2):
        for mi in range(4):
            for t in range(2):
                T = 32 + 4 * (k & 7); k += 1
                cvt8(a, T, acc(mi, ni) + 8 * t)
                a(f"buffer_store_dwordx4 {vr(T)}, v{2+ni}, s[16:19], 0 offen offset:{mi*64+t*32}")

def epi_compact(a):
    a(f"""v_and_b32 v2, 31, v1
    s_lshl_b32 s36, s28, 7
    s_add_u32 s36, s36, s30
    v_add_u32 v2, s36, v2
    v_mul_u32_u24 v2, 40, v2
    v_add_u32 v2, s33, v2
    v_add_u32 v3, s35, v8""")
    k = 0
    for ni in range(2):
        for j in range(4):
            a(f"""v_add_u32 v4, {ni*8+2*j}, v3
            v_mul_u32_u24 v5, 0xcccd, v4
            v_lshrrev_b32 v5, 18, v5
            v_mul_u32_u24 v6, 5, v5
            v_sub_u32 v6, v4, v6
            v_mul_u32_u24 v5, 0x14000, v5
            v_lshl_add_u32 v5, v6, 3, v5
            v_add_u32 v{10+k}, v5, v2""")
            for mi in range(4):
                s = acc(mi, ni) + 4 * j
                T = 32 + 2 * ((4 * k + mi) & 15)
                for r in range(4):
                    a(f"v_mul_f32 v{s+r}, s40, v{s+r}")
                a(f"""v_cvt_pk_bf16_f32 v{T}, v{s}, v{s+1}
                v_cvt_pk_bf16_f32 v{T+1}, v{s+2}, v{s+3}
                buffer_store_dwordx2 {vr(T,2)}, v{10+k}, s[16:19], 0 offen offset:{mi*1280}""")
            k += 1

def load_ptr(a, dst, slot):
    a(f"s_load_dwordx2 s[{dst}:{dst+1}], s[0:1], {slot*8}")

def tile_decode(a, base, ntb):
    a(f"""s_sub_u32 s35, s2, {base}
    s_and_b32 s36, s35, 1
    s_lshl_b32 s36, s36, 2
    s_bfe_u32 s37, s35, 0x20003
    s_add_u32 s30, s36, s37
    s_lshl_b32 s30, s30, 8
    s_bfe_u32 s36, s35, 0x20001
    s_mul_i32 s36, s36, {ntb}
    s_lshr_b32 s37, s35, 5
    s_add_u32 s35, s36, s37
    s_lshl_b32 s31, s35, 8""")

def gen_k1(a):
    name = "proj_kernel"
    kernel_header(a, name)
    cB = f32(128 ** -0.5 * LOG2E); cA = f32(20 ** -0.5 * LOG2E)
    stamp(a, 0)
    if TS: a("s_memrealtime s[54:55]\ns_waitcnt lgkmcnt(0)\ns_mov_b32 s70, s54")
    a("""s_cmp_ge_u32 s2, 448
    s_cbranch_scc1 k1_end
    s_load_dwordx2 s[42:43], s[0:1], 88
    s_mov_b32 s23, 0
    s_mov_b32 s24, 0
    s_mov_b32 s41, 0
    s_mov_b32 s40, 1.0
    s_cmp_ge_u32 s2, 384
    s_cbranch_scc1 k1_pa
    s_mov_b32 s21, 8192
    s_mov_b32 s25, 524288
    s_cmp_ge_u32 s2, 128
    s_cbranch_scc1 k1_p2""")
    load_ptr(a, 4, 3); load_ptr(a, 6, 5)
    tile_decode(a, 0, 4)
    a(f"""s_mov_b32 s20, 1280
    s_mov_b32 s22, 5
    s_mov_b32 s40, {cB}
    s_mov_b32 s32, 0
    s_lshl_b32 s33, s31, 6
    s_add_u32 s33, s33, {WS_QB}
    s_waitcnt lgkmcnt(0)""")
    srd(a, 8, 4, 2048*640*2); srd(a, 12, 6, 640*4096*2); srd(a, 16, 42, WS_SIZE)
    a("s_branch k1_T")
    a.label("k1_p2")
    load_ptr(a, 4, 4)
    a(f"""s_mov_b32 s20, 1024
    s_mov_b32 s22, 4
    s_cmp_ge_u32 s2, 256
    s_cbranch_scc1 k1_p3""")
    load_ptr(a, 6, 6)
    tile_decode(a, 128, 4)
    a(f"""s_mov_b32 s32, 0
    s_lshl_b32 s33, s31, 6
    s_add_u32 s33, s33, {WS_KB}
    s_waitcnt lgkmcnt(0)""")
    srd(a, 8, 4, 2048*512*2); srd(a, 12, 6, 512*4096*2); srd(a, 16, 42, WS_SIZE)
    a("s_branch k1_T")
    a.label("k1_p3")
    load_ptr(a, 6, 7)
    tile_decode(a, 256, 4)
    a(f"""s_lshl_b32 s33, s31, 12
    s_add_u32 s33, s33, {WS_VTB}
    s_mov_b32 s32, 0
    s_waitcnt lgkmcnt(0)""")
    srd(a, 8, 4, 2048*512*2); srd(a, 12, 6, 512*4096*2); srd(a, 16, 42, WS_SIZE)
    a("s_branch k1_N")
    a.label("k1_pa")
    load_ptr(a, 4, 0); load_ptr(a, 6, 1)
    tile_decode(a, 384, 2)
    a(f"""s_mov_b32 s20, 1280
    s_mov_b32 s21, 3840
    s_mov_b32 s25, {64*3840}
    s_mov_b32 s22, 5
    s_mov_b32 s32, 1
    s_waitcnt lgkmcnt(0)""")
    srd(a, 8, 4, 2048*640*2); srd(a, 12, 6, 640*1920*2); srd(a, 16, 42, WS_SIZE)
    a(f"""s_cmp_lt_u32 s35, 5
    s_cbranch_scc1 k1_T
    s_sub_u32 s33, s31, 1280
    s_lshl_b32 s33, s33, 12
    s_add_u32 s33, s33, {WS_VTA}""")
    a.label("k1_N")
    setup(a)
    mainloop(a, 'N')
    a("""s_cmp_eq_u32 s32, 0
    s_cbranch_scc1 k1_Nst
    s_lshl_b32 s36, s29, 6
    s_add_u32 s36, s36, s31
    s_cmp_ge_u32 s36, 1920
    s_cbranch_scc1 k1_end""")
    epi_colmajor_perm(a)
    a("s_endpgm")
    a.label("k1_Nst")
    epi_colmajor_blk(a)
    stamp(a, 4)
    stamp_out(a, 5)
    a("s_endpgm")
    a.label("k1_T")
    setup(a)
    mainloop(a, 'T')
    a("s_cmp_eq_u32 s32, 1\ns_cbranch_scc1 k1_compact")
    epi_rowmajor_perm(a, 8192, True)
    stamp(a, 4)
    stamp_out(a, 5)
    a("s_endpgm")
    a.label("k1_compact")
    a(f"""s_lshl_b32 s35, s29, 6
    s_add_u32 s35, s35, s31
    s_mov_b32 s33, {WS_QA}
    s_mov_b32 s40, {cA}
    s_cmp_lt_u32 s35, 640
    s_cbranch_scc1 k1_cq
    s_sub_u32 s35, s35, 640
    s_mov_b32 s33, {WS_KA}
    s_mov_b32 s40, 1.0""")
    a.label("k1_cq")
    a("s_lshr_b32 s35, s35, 2")
    epi_compact(a)
    stamp(a, 4)
    stamp_out(a, 5)
    a.label("k1_end")
    a("s_endpgm")
    return kernel_desc(name, 256)
```

```python
from common import *
import os

VRA, VRB, VDA, VL, VMX, VT, QF = 16, 24, 28, 36, 38, 4, 40
RING, NRING, AHEAD = 232, 6, int(os.environ.get('AHEAD', '3'))

TSA = int(os.environ.get('TSA', '0'))
def stamp(a):
    if TSA: a("s_memtime s[52:53]\ns_waitcnt lgkmcnt(0)\ns_mov_b32 m0, s59\ns_nop 0\ns_movreld_b32 s60, s52\ns_add_u32 s59, s59, 1")
def stamp_out(a, n):
    if not TSA: return
    a("s_waitcnt vmcnt(0)")
    stamp(a)
    L = a.uniq('tso')
    a(f"s_cmp_lg_u32 s2, {TSA-1}\ns_cbranch_scc1 {L}\ns_cmp_lg_u32 s27, 0\ns_cbranch_scc1 {L}\ns_load_dwordx2 s[52:53], s[0:1], 80\ns_waitcnt lgkmcnt(0)")
    srd(a, 12, 52, 256)
    for i in range(n):
        a(f"s_sub_u32 s50, s{60+i}, s60\nv_mov_b32 v2, s50\nv_mov_b32 v3, {4*i}\nbuffer_store_dword v2, v3, s[12:15], 0 offen")
    a.label(L)

class Cfg: pass
def cfgB():
    c = Cfg(); c.isA = False; c.nt = 8; c.ndt = 4; c.nq = 1
    c.S = [72, 104]; c.NEG = 136; c.P = 152; c.O = 168
    return c
def cfgA():
    c = Cfg(); c.isA = True; c.nt = 2; c.ndt = 1; c.nq = 2
    c.S = [72, 104]; c.NEG = 136; c.P = 168; c.O = 184
    return c

class Seq:
    def __init__(self, a):
        self.a = a; self.items = []; self.ri = 0
    def mfma(self, fkey, readfn, fmt):
        self.items.append(('m', fkey, readfn, fmt))
    def block(self, mf, fillers, tail=None):
        n = len(mf)
        if n == 0:
            for f in fillers: self.items.append(('f', f))
        else:
            for j, m in enumerate(mf):
                for f in fillers[j * len(fillers) // n:(j + 1) * len(fillers) // n]:
                    self.items.append(('f', f))
                self.items.append(('m',) + m)
        if tail: self.items.append(('f', tail))
    def emit(self):
        a = self.a
        keys = []
        for it in self.items:
            if it[0] == 'm' and it[1] not in keys: keys.append(it[1])
        rd = {it[1]: it[2] for it in self.items if it[0] == 'm'}
        regs = {}; cnt = {}; order = []
        issued = 0
        def issue():
            nonlocal issued
            k = keys[issued]; r = RING + 4 * (self.ri % NRING); self.ri += 1
            regs[k] = r; cnt[k] = rd[k](r); order.append(k); issued += 1
        while issued < min(1 + AHEAD, len(keys)): issue()
        for it in self.items:
            if it[0] == 'f':
                a(it[1]); continue
            k = it[1]
            ki = keys.index(k)
            while issued < min(ki + 1 + AHEAD, len(keys)): issue()
            if k in order:
                later = order[order.index(k) + 1:]
                a(f"s_waitcnt lgkmcnt({sum(cnt[x] for x in later)})")
                order = later
            a(it[3].replace("FRAG", vr(regs[k])))
        self.items = []

def qk_mfmas(a, c, par, kb, kstep):
    out = []
    if not c.isA:
        for z in range(2):
            for t in range(8):
                def rdf(r, z=z, t=t):
                    a(f"ds_read_b128 {vr(r)}, v{VRA+t} offset:{kb*16384 + z*8192}"); return 1
                d = c.S[par] + 16 * z
                cin = vr(c.NEG, 16) if t == 0 else vr(d, 16)
                out.append((('k', z, t), rdf, f"v_mfma_f32_32x32x16_bf16 {vr(d,16)}, FRAG, {vr(QF+4*t)}, {cin}"))
    else:
        off = kstep * 32 * 40
        for t in range(2):
            def rdf(r, t=t):
                if t == 0:
                    a(f"ds_read_b64 {vr(r,2)}, v{VRB} offset:{off}\nds_read_b64 {vr(r+2,2)}, v{VRB} offset:{off+8}"); return 2
                a(f"ds_read_b64 {vr(r,2)}, v{VRB+1} offset:{off}\nv_mov_b32 v{r+2}, 0\nv_mov_b32 v{r+3}, 0"); return 1
            for z in range(2):
                d = c.S[par] + 16 * z
                cin = vr(c.NEG + 16 * z, 16) if t == 0 else vr(d, 16)
                out.append((('k', t), rdf, f"v_mfma_f32_32x32x16_bf16 {vr(d,16)}, FRAG, {vr(QF+(2*z+t)*4)}, {cin}"))
    return out

def pv_mfmas(a, c, vb, vstep):
    out = []
    if not c.isA:
        for tt in range(4):
            for dt in range(4):
                def rdf(r, tt=tt, dt=dt):
                    a(f"ds_read_b128 {vr(r)}, v{VRB+tt} offset:{32768 + vb*16384 + dt*4096}"); return 1
                o = c.O + 16 * dt; p = c.P + 4 * tt
                out.append((('v', tt, dt), rdf, f"v_mfma_f32_32x32x16_bf16 {vr(o,16)}, FRAG, {vr(p)}, {vr(o,16)}"))
    else:
        for z in range(2):
            for tt in range(2):
                def rdf(r, tt=tt):
                    a(f"ds_read_b128 {vr(r)}, v{VRA+2*vstep+tt} offset:8192"); return 1
                o = c.O + 16 * z; p = c.P + 8 * z + 4 * tt
                out.append((('v', tt), rdf, f"v_mfma_f32_32x32x16_bf16 {vr(o,16)}, FRAG, {vr(p)}, {vr(o,16)}"))
    return out

def sm_exp(c, par, z):
    b = c.S[par] + 16 * z
    return [f"v_exp_f32 v{b+r}, v{b+r}" for r in range(16)]
def sm_cvt(c, par, z):
    b = c.S[par] + 16 * z
    return [f"v_cvt_pk_bf16_f32 v{c.P+8*z+r}, v{b+2*r}, v{b+2*r+1}" for r in range(8)]
def sm_add(c, par, z):
    if c.isA: return []
    b = c.S[par] + 16 * z
    return [f"v_add_f32 v{VL+(r&1)}, v{VL+(r&1)}, v{b+r}" for r in range(16)]
def sm_mask(c, par):
    out = []
    for z in range(2):
        for r in range(16):
            k = z * 32 + 8 * (r >> 2) + (r & 3); s = c.S[par] + 16 * z + r
            out.append(f"v_cmp_gt_i32 vcc, {k}, v3\ns_nop 1\nv_cndmask_b32 v{s}, v{s}, v2, vcc")
    return out
def sm_max(c, par):
    out = []
    b = c.S[par]
    if not c.isA:
        m0, m1 = VMX, VT
        out += [f"v_max3_f32 v{m0}, v{b}, v{b+1}, v{b+2}", f"v_max3_f32 v{m1}, v{b+3}, v{b+4}, v{b+5}"]
        for i in range(6, 30, 4):
            out += [f"v_max3_f32 v{m0}, v{m0}, v{b+i}, v{b+i+1}", f"v_max3_f32 v{m1}, v{m1}, v{b+i+2}, v{b+i+3}"]
        out += [f"v_max3_f32 v{m0}, v{m0}, v{b+30}, v{b+31}", f"v_max_f32 v{m0}, v{m0}, v{m1}",
                f"v_cmp_lt_f32 vcc, s30, v{m0}"]
    else:
        for i in range(0, 16, 2):
            for z in range(2):
                m = VMX + z; s = b + 16 * z
                if i == 0: out.append(f"v_max_f32 v{m}, v{s}, v{s+1}")
                else: out.append(f"v_max3_f32 v{m}, v{m}, v{s+i}, v{s+i+1}")
        out += [f"v_max_f32 v{VT+2}, v{VMX}, v{VMX+1}", f"v_cmp_lt_f32 vcc, s30, v{VT+2}"]
    return out

def branch_slow(a, slow, par):
    Ls, Lr = a.uniq("slow"), a.uniq("ret")
    slow.append((Ls, Lr, par))
    a(f"s_nop 1\ns_cbranch_vccnz {Ls}")
    a.label(Lr)

def prologue_qk(a, c, sq, slow, masked):
    sq.block(qk_mfmas(a, c, 0, 0, 0), [])
    sq.emit()
    a("s_nop 7\ns_nop 7")
    for f in (sm_mask(c, 0) if masked else []) + sm_max(c, 0): a(f)
    branch_slow(a, slow, 0)

def iteration(a, c, sq, slow, par, kb, kstep, vb, vstep, do_qk, masked, mid=None):
    nx = par ^ 1
    pv = pv_mfmas(a, c, vb, vstep)
    h = len(pv) // 2
    sq.block(qk_mfmas(a, c, nx, kb, kstep) if do_qk else [],
             sm_exp(c, par, 0) + sm_cvt(c, par, 0) + sm_add(c, par, 0), "s_nop 1")
    sq.block(pv[:h], sm_exp(c, par, 1) + sm_cvt(c, par, 1), "s_nop 1")
    f2 = sm_add(c, par, 1)
    if do_qk:
        f2 += (sm_mask(c, nx) if masked else []) + sm_max(c, nx)
    sq.block(pv[h:], f2)
    sq.emit()
    if mid: a(mid)
    if do_qk: branch_slow(a, slow, nx)

def slow_path(a, c, Ls, Lr, par):
    a.label(Ls)
    a("s_nop 7\ns_nop 7")
    for qs in range(c.nq):
        m = VMX + qs
        a(f"""v_mov_b32 v{VT}, v{m}
        v_mov_b32 v{VT+1}, v{m}
        s_nop 1
        v_permlane32_swap_b32 v{VT}, v{VT+1}
        v_max_f32 v{VT}, v{VT}, v{VT+1}
        v_max_f32 v{VT}, s31, v{VT}
        v_max_f32 v{VT+1}, 0, v{VT}
        v_sub_f32 v{VT+1}, 0, v{VT+1}
        v_exp_f32 v{VT+1}, v{VT+1}""")
        for r in range(16):
            a(f"v_sub_f32 v{c.NEG+16*qs+r}, v{c.NEG+16*qs+r}, v{VT}")
        ns = 32 // c.nq
        for r in range(ns):
            a(f"v_sub_f32 v{c.S[par]+ns*qs+r}, v{c.S[par]+ns*qs+r}, v{VT}")
        for r in range(16 * c.ndt):
            a(f"v_mul_f32 v{c.O+16*c.ndt*qs+r}, v{c.O+16*c.ndt*qs+r}, v{VT+1}")
        if not c.isA:
            a(f"v_mul_f32 v{VL}, v{VL}, v{VT+1}\nv_mul_f32 v{VL+1}, v{VL+1}, v{VT+1}")
    a(f"s_mov_b32 s30, 8.0\ns_mov_b32 s31, 0\ns_branch {Lr}")

def rd_addr_256(a):
    a("""v_and_b32 v4, 31, v1
    v_and_b32 v5, 15, v1
    v_xor_b32 v5, v5, v8
    v_lshlrev_b32 v4, 8, v4""")
    for t in range(8):
        a(f"v_xor_b32 v6, {2*t}, v5\nv_lshl_add_u32 v{VRA+t}, v6, 4, v4")

def init_state(a, c):
    for r in range(16 * c.nq): a(f"v_mov_b32 v{c.NEG+r}, 0")
    for r in range(16 * c.ndt * c.nq): a(f"v_mov_b32 v{c.O+r}, 0")
    a(f"""v_mov_b32 v{VL}, 0
    v_mov_b32 v{VL+1}, 0
    s_mov_b32 s30, 0xff7fffff
    s_mov_b32 s31, 0xff7fffff""")

def gen_attn(a):
    name = "attn_kernel"
    kernel_header(a, name)
    if TSA: a("s_mov_b32 s59, 0")
    stamp(a)
    a("""s_cmp_ge_u32 s2, 512
    s_cbranch_scc1 at_end
    s_load_dwordx2 s[4:5], s[0:1], 88
    v_and_b32 v1, 63, v0
    v_lshrrev_b32 v2, 6, v0
    v_lshrrev_b32 v8, 5, v1
    v_readfirstlane_b32 s27, v2
    s_and_b32 s20, s2, 31
    s_waitcnt lgkmcnt(0)""")
    srd(a, 8, 4, WS_SIZE)
    a("s_cmp_ge_u32 s2, 256\ns_cbranch_scc1 at_A")
    c = cfgB(); sq = Seq(a)
    if os.environ.get('SKIP_B'): a("s_endpgm")
    if os.environ.get('PRIO_B'): a("s_setprio " + os.environ['PRIO_B'])
    rd_addr_256(a)
    a("""v_and_b32 v4, 31, v1
    v_bfe_u32 v5, v1, 1, 3
    v_xor_b32 v5, v5, v8
    v_lshlrev_b32 v4, 7, v4""")
    for tt in range(4):
        a(f"v_xor_b32 v6, {2*tt}, v5\nv_lshl_add_u32 v{VRB+tt}, v6, 4, v4")
    a(f"""v_lshrrev_b32 v4, 4, v1
    v_and_b32 v5, 15, v1
    s_lshl_b32 s36, s20, 13
    s_add_u32 s36, s36, {WS_KB}""")
    for i in range(4):
        a(f"""s_lshl_b32 s37, s27, 4
        s_add_u32 s37, s37, {4*i}
        v_add_u32 v6, s37, v4
        v_and_b32 v7, 15, v6
        v_xor_b32 v7, v7, v5
        v_lshrrev_b32 v10, 5, v6
        v_lshlrev_b32 v10, 18, v10
        v_and_b32 v6, 31, v6
        v_lshl_add_u32 v10, v6, 5, v10
        v_lshrrev_b32 v6, 1, v7
        v_lshl_add_u32 v10, v6, 10, v10
        v_and_b32 v7, 1, v7
        v_lshl_add_u32 v10, v7, 4, v10
        v_add_u32 v{VDA+i}, s36, v10""")
    a(f"""v_lshrrev_b32 v4, 3, v1
    v_and_b32 v5, 7, v1
    s_lshl_b32 s36, s20, 19
    s_add_u32 s36, s36, {WS_VTB}""")
    for i in range(4):
        a(f"""s_lshl_b32 s37, s27, 5
        s_add_u32 s37, s37, {8*i}
        v_add_u32 v6, s37, v4
        v_bfe_u32 v7, v6, 1, 3
        v_xor_b32 v7, v7, v5
        v_lshrrev_b32 v10, 5, v6
        v_lshlrev_b32 v10, 17, v10
        v_and_b32 v6, 31, v6
        v_lshl_add_u32 v10, v6, 5, v10
        v_lshrrev_b32 v6, 1, v7
        v_lshl_add_u32 v10, v6, 10, v10
        v_and_b32 v7, 1, v7
        v_lshl_add_u32 v10, v7, 4, v10
        v_add_u32 v{VDA+4+i}, s36, v10""")
    a("""s_lshl_b32 s26, s27, 12
    s_lshr_b32 s21, s2, 5
    s_sub_u32 s21, 15, s21
    s_mov_b32 s50, 2
    v_mov_b32 v2, 0xf149f2ca""")
    def loadK(buf):
        for i in range(4):
            a(f"s_add_u32 m0, s26, {buf*16384 + i*1024}\ns_nop 0\nbuffer_load_dwordx4 v{VDA+i}, s[8:11], s23 offen lds")
        a(f"s_add_u32 s23, s23, {64*8192}")
    def loadV(buf):
        for i in range(4):
            a(f"s_add_u32 m0, s26, {32768 + buf*16384 + i*1024}\ns_nop 0\nbuffer_load_dwordx4 v{VDA+4+i}, s[8:11], s24 offen lds")
        a("s_add_u32 s24, s24, 4096")
    a.label("atB_outer")
    a(f"""s_mov_b32 s23, 0
    s_mov_b32 s24, 0
    s_barrier""")
    loadK(0)
    a(f"""s_lshl_b32 s22, s21, 7
    s_lshl_b32 s36, s27, 5
    s_add_u32 s22, s22, s36
    v_and_b32 v4, 31, v1
    v_add_u32 v9, s22, v4
    v_lshlrev_b32 v15, 5, v4
    v_lshl_add_u32 v15, v8, 4, v15
    s_lshl_b32 s22, s22, 13
    s_lshl_b32 s36, s20, 13
    s_add_u32 s36, s36, s22
    v_add_u32 v15, s36, v15
    s_movk_i32 s37, 0x1000""")
    for t in range(8):
        a(f"buffer_load_dwordx4 {vr(QF+4*t)}, v15, s[8:11], {'s37' if t >= 4 else '0'} offen offset:{(t&3)*1024}")
    loadK(1); loadV(0)
    init_state(a, c)
    a("""v_lshlrev_b32 v3, 2, v8
    v_sub_u32 v3, v9, v3
    s_waitcnt vmcnt(8)
    s_barrier""")
    slow = []
    stamp(a)
    prologue_qk(a, c, sq, slow, True)
    a("v_subrev_u32 v3, 64, v3\ns_waitcnt vmcnt(0)\ns_barrier\ns_cmp_eq_u32 s21, 0\ns_cbranch_scc1 atB_i0")
    loadK(0); loadV(1)
    a.label("atB_i0")
    iteration(a, c, sq, slow, 0, 1, 0, 0, 0, True, True)
    a("s_cmp_eq_u32 s21, 0\ns_cbranch_scc1 atB_final\ns_mov_b32 s22, s21\ns_cmp_eq_u32 s21, 1\ns_cbranch_scc1 atB_mpair")
    a.label("atB_loop")
    a("s_waitcnt vmcnt(0)\ns_barrier"); loadK(1); loadV(0)
    iteration(a, c, sq, slow, 1, 0, 0, 1, 0, True, False)
    a("s_waitcnt vmcnt(0)\ns_barrier"); loadK(0); loadV(1)
    iteration(a, c, sq, slow, 0, 1, 0, 0, 0, True, False)
    a("s_sub_u32 s22, s22, 1\ns_cmp_lg_u32 s22, 1\ns_cbranch_scc1 atB_loop")
    a.label("atB_mpair")
    stamp(a)
    a("""s_lshl_b32 s36, s21, 7
    v_lshlrev_b32 v3, 2, v8
    v_sub_u32 v3, v9, v3
    v_subrev_u32 v3, s36, v3
    s_waitcnt vmcnt(0)
    s_barrier""")
    loadK(1); loadV(0)
    iteration(a, c, sq, slow, 1, 0, 0, 1, 0, True, True)
    a("v_subrev_u32 v3, 64, v3\ns_waitcnt vmcnt(0)\ns_barrier"); loadV(1)
    iteration(a, c, sq, slow, 0, 1, 0, 0, 0, True, True)
    a.label("atB_final")
    a("s_cmp_lg_u32 s21, 0\ns_cbranch_scc1 atB_f2")
    loadV(1)
    a.label("atB_f2")
    a("s_waitcnt vmcnt(0)\ns_barrier")
    iteration(a, c, sq, slow, 1, 0, 0, 1, 0, False, False)
    stamp(a)
    a(f"""v_add_f32 v{VL}, v{VL}, v{VL+1}
    v_mov_b32 v{VL+1}, v{VL}
    s_nop 1
    v_permlane32_swap_b32 v{VL}, v{VL+1}
    v_add_f32 v{VL}, v{VL}, v{VL+1}
    v_rcp_f32 v{VL}, v{VL}
    v_add_u32 v15, {WS_CTX - WS_QB}, v15
    s_movk_i32 s37, 0x1000
    s_nop 7""")
    k = 0
    for dt in range(4):
        for t in range(2):
            T = 72 + 4 * (k & 3); k += 1
            o = c.O + dt * 16 + 8 * t
            for r in range(8): a(f"v_mul_f32 v{o+r}, v{o+r}, v{VL}")
            for r in range(4): a(f"v_cvt_pk_bf16_f32 v{T+r}, v{o+2*r}, v{o+2*r+1}")
            a(f"buffer_store_dwordx4 {vr(T)}, v15, s[8:11], {'s37' if dt >= 2 else '0'} offen offset:{((dt&1)*2+t)*1024}")
    a("""s_sub_u32 s21, 15, s21
    s_sub_u32 s50, s50, 1
    s_cmp_lg_u32 s50, 0
    s_cbranch_scc1 atB_outer""")
    stamp_out(a, 9)
    a("s_endpgm")
    for Ls, Lr, par in slow: slow_path(a, c, Ls, Lr, par)
    a.label("at_A")
    c = cfgA(); sq = Seq(a)
    if os.environ.get('PRIO_A'): a("s_setprio " + os.environ['PRIO_A'])
    a(f"""s_sub_u32 s21, s2, 256
    s_lshr_b32 s21, s21, 5
    s_lshl_b32 s22, s21, 8
    s_lshl_b32 s36, s27, 6
    s_add_u32 s22, s22, s36
    v_and_b32 v4, 31, v1
    v_add_u32 v9, s22, v4
    s_lshl_b32 s36, s20, 11
    v_add_u32 v5, s36, v9
    v_mul_u32_u24 v5, 40, v5
    v_add_u32 v5, {WS_QA}, v5
    v_lshl_add_u32 v6, v8, 4, v5
    v_cmp_eq_u32 vcc, 0, v8""")
    for qs in range(2):
        q = QF + qs * 8
        a(f"""buffer_load_dwordx2 {vr(q,2)}, v6, s[8:11], 0 offen offset:{qs*1280}
        buffer_load_dwordx2 {vr(q+2,2)}, v6, s[8:11], 0 offen offset:{qs*1280+8}
        buffer_load_dwordx2 {vr(q+4,2)}, v5, s[8:11], 0 offen offset:{qs*1280+32}
        v_mov_b32 v{q+6}, 0
        v_mov_b32 v{q+7}, 0""")
    a("s_waitcnt vmcnt(0)")
    for qs in range(2):
        q = QF + qs * 8
        a(f"v_cndmask_b32 v{q+4}, 0, v{q+4}, vcc\nv_cndmask_b32 v{q+5}, 0, v{q+5}, vcc")
    rd_addr_256(a)
    a(f"""v_and_b32 v4, 31, v1
    v_mul_u32_u24 v4, 40, v4
    v_lshl_add_u32 v{VRB}, v8, 4, v4
    v_add_u32 v{VRB+1}, 32, v4
    v_lshlrev_b32 v4, 2, v1
    v_mov_b32 v5, 0x3f803f80""")
    for b in range(4):
        a(f"ds_write_b32 v4, v5 offset:{b*16384 + 8192 + 20*256}")
    for i in range(3):
        Lv, Ld = a.uniq("slv"), a.uniq("sld")
        a(f"""s_mul_i32 s36, s27, 3
        s_add_u32 s36, s36, {i}
        s_cmp_ge_u32 s36, 10
        s_cselect_b32 s37, 10, 0
        s_sub_u32 s36, s36, s37
        s_mov_b32 s{40+i}, 0
        s_cmp_ge_u32 s36, 5
        s_cbranch_scc1 {Lv}
        s_lshl_b32 s{46+i}, s36, 10
        s_mov_b32 s{43+i}, 5120
        s_mul_i32 s37, s20, 81920
        s_add_u32 s37, s37, s{46+i}
        s_add_u32 s37, s37, {WS_KA}
        v_lshl_add_u32 v{VDA+i}, v1, 4, s37
        s_branch {Ld}""")
        a.label(Lv)
        a(f"""s_sub_u32 s36, s36, 5
        s_lshl_b32 s{46+i}, s36, 10
        s_add_u32 s{46+i}, s{46+i}, 8192
        s_mov_b32 s{43+i}, 256
        s_lshl_b32 s36, s36, 2
        v_lshrrev_b32 v4, 4, v1
        v_add_u32 v4, s36, v4
        v_and_b32 v5, 15, v4
        v_and_b32 v6, 15, v1
        v_xor_b32 v5, v5, v6
        s_mul_i32 s37, s20, 20
        v_add_u32 v4, s37, v4
        v_lshlrev_b32 v4, 12, v4
        v_lshl_add_u32 v4, v5, 4, v4
        v_add_u32 v{VDA+i}, {WS_VTA}, v4""")
        a.label(Ld)
    init_state(a, c)
    def loadsA():
        for i in range(3):
            a(f"""s_add_u32 m0, s{46+i}, s49
            s_nop 0
            buffer_load_dwordx4 v{VDA+i}, s[8:11], s{40+i} offen lds
            s_add_u32 s{40+i}, s{40+i}, s{43+i}""")
        a("s_add_u32 s49, s49, 16384\ns_and_b32 s49, s49, 0xffff")
    def bump(regs):
        return "\n".join(f"v_add_u32 v{r}, 0x4000, v{r}\nv_and_b32 v{r}, 0xffff, v{r}" for r in regs)
    a("s_mov_b32 s49, 0")
    loadsA(); loadsA()
    slow = []
    a("s_mov_b32 s21, 15\ns_waitcnt vmcnt(3) lgkmcnt(0)\ns_barrier")
    stamp(a)
    prologue_qk(a, c, sq, slow, False)
    kb = [VRB, VRB + 1]; vbs = list(range(VRA, VRA + 8))
    a.label("atA_loop")
    for st in range(3):
        iteration(a, c, sq, slow, st & 1, 0, st + 1, 0, st, True, False)
    a("s_waitcnt vmcnt(0)\ns_barrier\ns_cmp_eq_u32 s21, 1\ns_cbranch_scc1 atA_nold")
    loadsA()
    a.label("atA_nold")
    a(bump(kb))
    iteration(a, c, sq, slow, 1, 0, 0, 0, 3, True, False, mid=bump(vbs))
    a("s_sub_u32 s21, s21, 1\ns_cmp_lg_u32 s21, 0\ns_cbranch_scc1 atA_loop")
    for st in range(3):
        iteration(a, c, sq, slow, st & 1, 0, st + 1, 0, st, True, False)
    iteration(a, c, sq, slow, 1, 0, 0, 0, 3, False, False)
    a(f"""s_nop 7
    s_nop 7
    v_mul_u32_u24 v5, 1280, v9
    s_mul_i32 s36, s20, 40
    s_add_u32 s36, s36, {WS_OA}
    v_lshl_add_u32 v5, v8, 3, v5
    v_add_u32 v5, s36, v5""")
    for qs in range(2):
        o = c.O + qs * 16
        a(f"""v_mov_b32 v6, v{o+8}
        v_mov_b32 v7, v{o+8}
        s_nop 1
        v_permlane32_swap_b32 v6, v7
        v_rcp_f32 v7, v7
        s_nop 0""")
        for r in range(12): a(f"v_mul_f32 v{o+r}, v{o+r}, v7")
        for j in range(3):
            T = 72 + 2 * (qs * 3 + j)
            a(f"v_cvt_pk_bf16_f32 v{T}, v{o+4*j}, v{o+4*j+1}\nv_cvt_pk_bf16_f32 v{T+1}, v{o+4*j+2}, v{o+4*j+3}")
            if j == 2: a("s_mov_b32 exec_hi, 0")
            a(f"buffer_store_dwordx2 {vr(T,2)}, v5, s[8:11], 0 offen offset:{j*16}")
            if j == 2: a("s_mov_b32 exec_hi, -1")
        if qs == 0: a(f"v_add_u32 v5, {32*1280}, v5")
    stamp_out(a, 3)
    a("s_endpgm")
    for Ls, Lr, par in slow: slow_path(a, c, Ls, Lr, par)
    a.label("at_end")
    a("s_endpgm")
    return kernel_desc(name, 256)
```

```python
from common import *
import os
TS = int(os.environ.get('TS', '0'))
def stamp(a, i):
    if TS: a(f"s_memtime s[50:51]\ns_waitcnt lgkmcnt(0)\ns_mov_b32 s{60+i}, s50")
def stamp_out(a, n):
    if not TS: return
    a("s_waitcnt vmcnt(0)")
    stamp(a, n)
    L = a.uniq('tso')
    a(f"""s_memrealtime s[54:55]
    s_waitcnt lgkmcnt(0)
    v_mov_b32 v4, s70
    v_mov_b32 v5, s54
    s_lshl_b32 s50, s2, 3
    s_add_u32 s50, s50, {200*MB}
    v_mov_b32 v3, s50
    buffer_store_dwordx2 v[4:5], v3, s[16:19], 0 offen""")
    a(f"s_cmp_lg_u32 s2, {TS-1}\ns_cbranch_scc1 {L}\ns_cmp_lg_u32 s27, 0\ns_cbranch_scc1 {L}\ns_load_dwordx2 s[52:53], s[0:1], 80\ns_waitcnt lgkmcnt(0)")
    srd(a, 56, 52, 256)
    for i in range(n + 1):
        a(f"s_sub_u32 s50, s{60+i}, s60\nv_mov_b32 v2, s50\nv_mov_b32 v3, {4*i}\nbuffer_store_dword v2, v3, s[56:59], 0 offen")
    a.label(L)
VXG, VWG = 10, 14
VXR, VWR = 18, 26
FR = 64
ACC = 128

class G: pass
g = G(); g.nmi = 4; g.stage = 65536; g.xstep = 128; g.blkx = False
def cfg_big():
    g.nmi = 4; g.stage = 65536; g.xstep = 128; g.blkx = False
def cfg_n128(blkx):
    g.nmi = 2; g.stage = 49152; g.xstep = 4096 if blkx else 128; g.blkx = blkx

def acc(mi, ni):
    return ACC + (ni * 4 + mi) * 16

def issue_loads(a, buf):
    for i in range(4):
        a(f"""s_add_u32 m0, s26, {buf*g.stage + i*1024}
        s_nop 0
        buffer_load_dwordx4 v{VXG+i}, s[8:11], s23 offen lds""")
    for i in range(4 if g.nmi == 4 else 2):
        a(f"""s_add_u32 m0, s{26 if g.nmi == 4 else 34}, {buf*g.stage + 32768 + i*1024}
        s_nop 0
        buffer_load_dwordx4 v{VWG+i}, s[12:15], s24 offen lds""")
    a(f"""s_add_u32 s23, s23, {g.xstep}
    s_add_u32 s24, s24, s25""")

def read_frags(a, buf, kk, st, perm):
    b = FR + 24 * st
    for ni in range(2):
        for u in range(2):
            a(f"ds_read_b64_tr_b16 {vr(b+16+4*ni+2*u,2)}, v{VWR+2*buf+ni} offset:{kk*4096 + u*(2048 if perm else 1024)}")
    for mi in range(g.nmi):
        a(f"ds_read_b128 {vr(b+4*mi)}, v{VXR+4*buf+kk} offset:{mi*4096}")

def compute(a, buf, orient, perm):
    read_frags(a, buf, 0, 0, perm)
    for kk in range(4):
        st = kk & 1
        if kk < 3:
            read_frags(a, buf, kk + 1, st ^ 1, perm)
        b = FR + 24 * st
        for mi in range(g.nmi):
            a(f"s_waitcnt lgkmcnt({(4 + g.nmi if kk < 3 else 0) + g.nmi - 1 - mi})")
            for ni in range(2):
                X, W = b + 4 * mi, b + 16 + 4 * ni
                A, B = (W, X) if orient == 'T' else (X, W)
                d = acc(mi, ni)
                a(f"v_mfma_f32_32x32x16_bf16 {vr(d,16)}, {vr(A)}, {vr(B)}, {vr(d,16)}")

def mainloop(a, orient, perm=False):
    stamp(a, 1)
    issue_loads(a, 0)
    L, Lskip = a.uniq("gl"), a.uniq("gs")
    if TS:
        a("s_waitcnt vmcnt(0)\ns_barrier"); stamp(a, 2)
    a.label(L)
    a("s_waitcnt vmcnt(0)\ns_barrier")
    issue_loads(a, 1)
    compute(a, 0, orient, perm)
    a("s_waitcnt vmcnt(0)\ns_barrier")
    a(f"s_sub_u32 s22, s22, 1\ns_cmp_eq_u32 s22, 0\ns_cbranch_scc1 {Lskip}")
    issue_loads(a, 0)
    a.label(Lskip)
    compute(a, 1, orient, perm)
    a(f"s_cmp_lg_u32 s22, 0\ns_cbranch_scc1 {L}")
    a("s_nop 15")
    stamp(a, 3)

def setup(a, perm=False):
    a("""v_and_b32 v1, 63, v0
    v_lshrrev_b32 v2, 6, v0
    s_nop 0
    v_readfirstlane_b32 s27, v2
    s_lshl_b32 s26, s27, 12
    """ + ("s_lshr_b32 s28, s27, 2\ns_and_b32 s29, s27, 3" if g.nmi == 4 else "s_lshr_b32 s28, s27, 1\ns_and_b32 s29, s27, 1\ns_lshl_b32 s34, s27, 11") + """
    v_lshrrev_b32 v2, 3, v1
    v_and_b32 v3, 7, v1
    v_lshrrev_b32 v4, 4, v1
    v_and_b32 v5, 15, v1""")
    for i in range(4):
        a(f"""s_lshl_b32 s36, s27, 5
        s_add_u32 s36, s36, {i*8}
        s_add_u32 s36, s36, s30
        v_add_u32 v6, s36, v2
        v_add_u32 v7, {(i&1)*4}, v4
        v_xor_b32 v7, v7, v3""")
        if g.blkx:
            a(f"""v_lshrrev_b32 v9, 5, v6
            v_lshlrev_b32 v9, 18, v9
            v_and_b32 v6, 31, v6
            v_lshl_add_u32 v9, v6, 5, v9
            v_lshrrev_b32 v6, 1, v7
            v_lshl_add_u32 v9, v6, 10, v9
            v_and_b32 v7, 1, v7
            v_lshl_add_u32 v9, v7, 4, v9
            v_add_u32 v{VXG+i}, s41, v9""")
        else:
            a(f"""v_mul_lo_u32 v6, v6, s20
            v_lshlrev_b32 v7, 4, v7
            v_add3_u32 v{VXG+i}, v6, v7, s41""")
    a("""v_lshlrev_b32 v7, 2, v4
    v_xor_b32 v7, v7, v5
    v_lshlrev_b32 v7, 4, v7""")
    if g.nmi == 4:
        a("""s_lshl_b32 s37, s28, 7
        s_add_u32 s37, s37, s31
        s_lshl_b32 s37, s37, 1""")
    else:
        a("s_lshl_b32 s37, s31, 1")
    for i in range(4 if g.nmi == 4 else 2):
        a(f"""s_lshl_b32 s36, {'s29, 4' if g.nmi == 4 else 's27, 3'}
        s_add_u32 s36, s36, {i*4}
        v_add_u32 v6, s36, v4
        v_mul_lo_u32 v6, v6, s21
        v_add3_u32 v{VWG+i}, v6, v7, s37""")
    a("""v_and_b32 v6, 31, v1
    v_lshrrev_b32 v8, 5, v1
    v_bfe_u32 v7, v6, 1, 3
    v_xor_b32 v7, v7, v8
    v_lshlrev_b32 v6, 7, v6
    s_lshl_b32 s36, s28, """ + ("14" if g.nmi == 4 else "13") + """
    v_add_u32 v6, s36, v6""")
    for kk in range(4):
        a(f"""v_xor_b32 v9, {2*kk}, v7
        v_lshl_add_u32 v{VXR+kk}, v9, 4, v6
        v_add_u32 v{VXR+4+kk}, {g.stage}, v{VXR+kk}""")
    a(f"""v_bfe_u32 v6, v1, 2, 2
    v_and_b32 v7, 3, v1
    v_bfe_u32 v9, v1, 4, 1
    v_lshlrev_b32 v30, {2 if perm else 3}, v8
    v_add_u32 v30, v30, v6
    v_lshlrev_b32 v30, 8, v30
    v_lshrrev_b32 v31, 1, v7
    v_lshl_add_u32 v31, v9, 1, v31
    s_and_b32 s36, s29, 1
    s_lshl_b32 s36, s36, 3
    v_add_u32 v31, s36, v31
    v_lshlrev_b32 v32, 2, v6
    v_xor_b32 v31, v31, v32
    v_and_b32 v7, 1, v7
    v_lshl_add_u32 v30, v7, 3, v30
    s_lshr_b32 s36, s29, 1
    s_lshl_b32 s36, s36, 14
    s_add_u32 s36, s36, 32768
    v_add_u32 v30, s36, v30""")
    for ni in range(2):
        a(f"""v_xor_b32 v32, {4*ni}, v31
        v_lshl_add_u32 v{VWR+ni}, v32, 4, v30
        v_add_u32 v{VWR+2+ni}, {g.stage}, v{VWR+ni}""")
    for ni in range(2):
        for mi in range(g.nmi):
            for r in range(16):
                a(f"v_mov_b32 v{acc(mi, ni)+r}, 0")

def cvt8(a, dst, src, scale=False):
    if scale:
        for r in range(8):
            a(f"v_mul_f32 v{src+r}, s40, v{src+r}")
    for r in range(4):
        a(f"v_cvt_pk_bf16_f32 v{dst+r}, v{src+2*r}, v{src+2*r+1}")

def epi_rowmajor_perm(a, ldo, scale):
    a(f"""v_and_b32 v2, 31, v1
    v_lshlrev_b32 v2, 5, v2
    v_lshl_add_u32 v2, v8, 4, v2
    s_lshl_b32 s36, s28, 7
    s_add_u32 s36, s36, s30
    s_mul_i32 s36, s36, {ldo}
    s_add_u32 s36, s36, s33
    s_lshl_b32 s37, s29, 12
    s_add_u32 s36, s36, s37
    v_add_u32 v2, s36, v2
    v_add_u32 v3, {32*ldo}, v2
    v_add_u32 v4, {64*ldo}, v2
    v_add_u32 v5, {96*ldo}, v2""")
    k = 0
    for mi in range(4):
        for ni in range(2):
            for t in range(2):
                T = 32 + 4 * (k & 7); k += 1
                cvt8(a, T, acc(mi, ni) + 8 * t, scale)
                a(f"buffer_store_dwordx4 {vr(T)}, v{2+mi}, s[16:19], 0 offen offset:{(ni*2+t)*1024}")

def epi_colmajor_blk(a):
    a(f"""v_and_b32 v2, 31, v1
    v_lshlrev_b32 v2, 5, v2
    v_lshl_add_u32 v2, v8, 4, v2
    s_lshl_b32 s36, s29, 18
    s_add_u32 s36, s36, s33
    s_lshl_b32 s37, s28, 7
    s_add_u32 s37, s37, s30
    s_lshl_b32 s37, s37, 6
    s_add_u32 s36, s36, s37
    v_add_u32 v2, s36, v2
    v_add_u32 v3, 4096, v2
    v_add_u32 v4, {32*4096}, v2
    v_add_u32 v5, {32*4096+4096}, v2""")
    k = 0
    for ni in range(2):
        for mi in range(4):
            for t in range(2):
                T = 32 + 4 * (k & 7); k += 1
                cvt8(a, T, acc(mi, ni) + 8 * t)
                a(f"buffer_store_dwordx4 {vr(T)}, v{2+ni*2+(mi>>1)}, s[16:19], 0 offen offset:{((mi&1)*2+t)*1024}")

def epi_colmajor_perm(a):
    a(f"""v_and_b32 v2, 31, v1
    s_lshl_b32 s36, s29, 6
    v_add_u32 v2, s36, v2
    v_lshlrev_b32 v2, 12, v2
    s_lshl_b32 s36, s28, 7
    s_add_u32 s36, s36, s30
    s_lshl_b32 s36, s36, 1
    s_add_u32 s36, s36, s33
    v_lshlrev_b32 v3, 4, v8
    v_add3_u32 v2, v2, v3, s36
    v_add_u32 v3, {32*4096}, v2""")
    k = 0
    for ni in range(2):
        for mi in range(4):
            for t in range(2):
                T = 32 + 4 * (k & 7); k += 1
                cvt8(a, T, acc(mi, ni) + 8 * t)
                a(f"buffer_store_dwordx4 {vr(T)}, v{2+ni}, s[16:19], 0 offen offset:{mi*64+t*32}")

def epi_compact(a):
    a(f"""v_and_b32 v2, 31, v1
    s_lshl_b32 s36, s28, 7
    s_add_u32 s36, s36, s30
    v_add_u32 v2, s36, v2
    v_mul_u32_u24 v2, 40, v2
    v_add_u32 v2, s33, v2
    v_add_u32 v3, s35, v8""")
    k = 0
    for ni in range(2):
        for j in range(4):
            a(f"""v_add_u32 v4, {ni*8+2*j}, v3
            v_mul_u32_u24 v5, 0xcccd, v4
            v_lshrrev_b32 v5, 18, v5
            v_mul_u32_u24 v6, 5, v5
            v_sub_u32 v6, v4, v6
            v_mul_u32_u24 v5, 0x14000, v5
            v_lshl_add_u32 v5, v6, 3, v5
            v_add_u32 v{10+k}, v5, v2""")
            for mi in range(4):
                s = acc(mi, ni) + 4 * j
                T = 32 + 2 * ((4 * k + mi) & 15)
                for r in range(4):
                    a(f"v_mul_f32 v{s+r}, s40, v{s+r}")
                a(f"""v_cvt_pk_bf16_f32 v{T}, v{s}, v{s+1}
                v_cvt_pk_bf16_f32 v{T+1}, v{s+2}, v{s+3}
                buffer_store_dwordx2 {vr(T,2)}, v{10+k}, s[16:19], 0 offen offset:{mi*1280}""")
            k += 1

def load_ptr(a, dst, slot):
    a(f"s_load_dwordx2 s[{dst}:{dst+1}], s[0:1], {slot*8}")

def tile_decode(a, base, ntb):
    a(f"""s_sub_u32 s35, s2, {base}
    s_and_b32 s36, s35, 1
    s_lshl_b32 s36, s36, 2
    s_bfe_u32 s37, s35, 0x20003
    s_add_u32 s30, s36, s37
    s_lshl_b32 s30, s30, 8
    s_bfe_u32 s36, s35, 0x20001
    s_mul_i32 s36, s36, {ntb}
    s_lshr_b32 s37, s35, 5
    s_add_u32 s35, s36, s37
    s_lshl_b32 s31, s35, 8""")

def gen_k1(a):
    name = "proj_kernel"
    kernel_header(a, name)
    cfg_big()
    cB = f32(128 ** -0.5 * LOG2E); cA = f32(20 ** -0.5 * LOG2E)
    stamp(a, 0)
    if TS: a("s_memrealtime s[54:55]\ns_waitcnt lgkmcnt(0)\ns_mov_b32 s70, s54")
    a("""s_cmp_ge_u32 s2, 448
    s_cbranch_scc1 k1_end
    s_load_dwordx2 s[42:43], s[0:1], 88
    s_mov_b32 s23, 0
    s_mov_b32 s24, 0
    s_mov_b32 s41, 0
    s_mov_b32 s40, 1.0
    s_mov_b32 s21, 8192
    s_mov_b32 s25, 524288
    s_cmp_ge_u32 s2, 192
    s_cbranch_scc1 k1_p2
    s_cmp_ge_u32 s2, 128
    s_cbranch_scc1 k1_pa""")
    load_ptr(a, 4, 3); load_ptr(a, 6, 5)
    tile_decode(a, 0, 4)
    a(f"""s_mov_b32 s20, 1280
    s_mov_b32 s22, 5
    s_mov_b32 s40, {cB}
    s_mov_b32 s32, 0
    s_lshl_b32 s33, s31, 6
    s_add_u32 s33, s33, {WS_QB}
    s_waitcnt lgkmcnt(0)""")
    srd(a, 8, 4, 2048*640*2); srd(a, 12, 6, 640*4096*2); srd(a, 16, 42, WS_SIZE)
    a("s_branch k1_T")
    a.label("k1_p2")
    load_ptr(a, 4, 4)
    a(f"""s_mov_b32 s20, 1024
    s_mov_b32 s22, 4
    s_cmp_ge_u32 s2, 320
    s_cbranch_scc1 k1_p3""")
    load_ptr(a, 6, 6)
    tile_decode(a, 192, 4)
    a(f"""s_mov_b32 s32, 0
    s_lshl_b32 s33, s31, 6
    s_add_u32 s33, s33, {WS_KB}
    s_waitcnt lgkmcnt(0)""")
    srd(a, 8, 4, 2048*512*2); srd(a, 12, 6, 512*4096*2); srd(a, 16, 42, WS_SIZE)
    a("s_branch k1_T")
    a.label("k1_p3")
    load_ptr(a, 6, 7)
    tile_decode(a, 320, 4)
    a(f"""s_lshl_b32 s33, s31, 12
    s_add_u32 s33, s33, {WS_VTB}
    s_mov_b32 s32, 0
    s_waitcnt lgkmcnt(0)""")
    srd(a, 8, 4, 2048*512*2); srd(a, 12, 6, 512*4096*2); srd(a, 16, 42, WS_SIZE)
    a("s_branch k1_N")
    a.label("k1_pa")
    load_ptr(a, 4, 0); load_ptr(a, 6, 1)
    tile_decode(a, 128, 2)
    a(f"""s_mov_b32 s20, 1280
    s_mov_b32 s21, 3840
    s_mov_b32 s25, {64*3840}
    s_mov_b32 s22, 5
    s_mov_b32 s32, 1
    s_waitcnt lgkmcnt(0)""")
    srd(a, 8, 4, 2048*640*2); srd(a, 12, 6, 640*1920*2); srd(a, 16, 42, WS_SIZE)
    a(f"""s_cmp_lt_u32 s35, 5
    s_cbranch_scc1 k1_T
    s_sub_u32 s33, s31, 1280
    s_lshl_b32 s33, s33, 12
    s_add_u32 s33, s33, {WS_VTA}""")
    a.label("k1_N")
    setup(a)
    mainloop(a, 'N')
    a("""s_cmp_eq_u32 s32, 0
    s_cbranch_scc1 k1_Nst
    s_lshl_b32 s36, s29, 6
    s_add_u32 s36, s36, s31
    s_cmp_ge_u32 s36, 1920
    s_cbranch_scc1 k1_end""")
    epi_colmajor_perm(a)
    a("s_endpgm")
    a.label("k1_Nst")
    epi_colmajor_blk(a)
    stamp(a, 4)
    stamp_out(a, 5)
    a("s_endpgm")
    a.label("k1_T")
    setup(a)
    mainloop(a, 'T')
    a("s_cmp_eq_u32 s32, 1\ns_cbranch_scc1 k1_compact")
    epi_rowmajor_perm(a, 8192, True)
    stamp(a, 4)
    stamp_out(a, 5)
    a("s_endpgm")
    a.label("k1_compact")
    a(f"""s_lshl_b32 s35, s29, 6
    s_add_u32 s35, s35, s31
    s_mov_b32 s33, {WS_QA}
    s_mov_b32 s40, {cA}
    s_cmp_lt_u32 s35, 640
    s_cbranch_scc1 k1_cq
    s_sub_u32 s35, s35, 640
    s_mov_b32 s33, {WS_KA}
    s_mov_b32 s40, 1.0""")
    a.label("k1_cq")
    a("s_lshr_b32 s35, s35, 2")
    epi_compact(a)
    stamp(a, 4)
    stamp_out(a, 5)
    a.label("k1_end")
    a("s_endpgm")
    return kernel_desc(name, 256)

def epi_out(a, fp32):
    esz = 4 if fp32 else 2
    a(f"""v_and_b32 v2, 31, v1
    s_lshl_b32 s36, s28, 6
    s_add_u32 s36, s36, s30
    v_add_u32 v2, s36, v2
    v_mul_u32_u24 v2, 2560, v2
    s_mul_i32 s36, s29, {64*esz}
    s_add_u32 s36, s36, s33
    v_mul_u32_u24 v3, {4*esz}, v8
    v_add3_u32 v2, v2, v3, s36
    v_add_u32 v3, {32*2560}, v2""")
    k = 0
    for ni in range(2):
        for mi in range(2):
            for j in range(4):
                s = acc(mi, ni) + 4 * j
                off = (ni * 32 + 8 * j) * esz
                if fp32:
                    a(f"buffer_store_dwordx4 {vr(s)}, v{2+mi}, s[16:19], 0 offen offset:{off}")
                else:
                    T = 32 + 2 * (k & 7); k += 1
                    a(f"""v_cvt_pk_bf16_f32 v{T}, v{s}, v{s+1}
                    v_cvt_pk_bf16_f32 v{T+1}, v{s+2}, v{s+3}
                    buffer_store_dwordx2 {vr(T,2)}, v{2+mi}, s[16:19], 0 offen offset:{off}""")

def gen_k3(a):
    name = "oproj_kernel"
    kernel_header(a, name)
    a("""s_cmp_ge_u32 s2, 200
    s_cbranch_scc1 k3_end
    s_load_dwordx2 s[42:43], s[0:1], 88
    s_mov_b32 s21, 1280
    s_mov_b32 s25, 81920
    s_mov_b32 s23, 0
    s_cmp_ge_u32 s2, 160
    s_cbranch_scc1 k3_p1""")
    load_ptr(a, 6, 8)
    a(f"""s_bfe_u32 s44, s2, 0x20001
    s_and_b32 s36, s2, 1
    s_lshl_b32 s36, s36, 2
    s_bfe_u32 s37, s2, 0x20003
    s_add_u32 s30, s36, s37
    s_lshl_b32 s30, s30, 8
    s_lshr_b32 s31, s2, 5
    s_lshl_b32 s31, s31, 7
    s_mov_b32 s20, 8192
    s_mov_b32 s22, 8
    s_lshl_b32 s41, s44, 16
    s_add_u32 s41, s41, {WS_CTX}
    s_mul_i32 s24, s44, {1024*1280}
    s_mul_i32 s33, s44, {2048*640*4}
    s_add_u32 s33, s33, {WS_PART}
    s_lshl_b32 s45, s31, 2
    s_add_u32 s33, s33, s45
    s_waitcnt lgkmcnt(0)""")
    srd(a, 8, 42, WS_SIZE); srd(a, 12, 6, 4096*640*2); srd(a, 16, 42, WS_SIZE)
    cfg_n128(True)
    setup(a, True)
    mainloop(a, 'T', True)
    epi_out(a, True)
    a("s_endpgm")
    a.label("k3_p1")
    load_ptr(a, 6, 2); load_ptr(a, 4, 9)
    a(f"""s_sub_u32 s35, s2, 160
    s_and_b32 s30, s35, 7
    s_lshl_b32 s30, s30, 8
    s_lshr_b32 s31, s35, 3
    s_lshl_b32 s31, s31, 7
    s_mov_b32 s20, 1280
    s_mov_b32 s22, 5
    s_mov_b32 s41, {WS_OA}
    s_mov_b32 s24, 0
    s_lshl_b32 s33, s31, 1
    s_waitcnt lgkmcnt(0)""")
    srd(a, 8, 42, WS_SIZE); srd(a, 12, 6, 640*640*2); srd(a, 16, 4, 2048*1280*2)
    cfg_n128(False)
    setup(a)
    mainloop(a, 'T')
    epi_out(a, False)
    a.label("k3_end")
    a("s_endpgm")
    return kernel_desc(name, 256)
```

```python
from common import *
import os
TS = int(os.environ.get('TS', '0'))
def stamp(a, i):
    if TS: a(f"s_memtime s[50:51]\ns_waitcnt lgkmcnt(0)\ns_mov_b32 s{60+i}, s50")
def stamp_out(a, n):
    if not TS: return
    a("s_waitcnt vmcnt(0)")
    stamp(a, n)
    L = a.uniq('tso')
    a(f"""s_memrealtime s[54:55]
    s_waitcnt lgkmcnt(0)
    v_mov_b32 v4, s70
    v_mov_b32 v5, s54
    s_lshl_b32 s50, s2, 3
    s_add_u32 s50, s50, {200*MB}
    v_mov_b32 v3, s50
    buffer_store_dwordx2 v[4:5], v3, s[16:19], 0 offen""")
    a(f"s_cmp_lg_u32 s2, {TS-1}\ns_cbranch_scc1 {L}\ns_cmp_lg_u32 s27, 0\ns_cbranch_scc1 {L}\ns_load_dwordx2 s[52:53], s[0:1], 80\ns_waitcnt lgkmcnt(0)")
    srd(a, 56, 52, 256)
    for i in range(n + 1):
        a(f"s_sub_u32 s50, s{60+i}, s60\nv_mov_b32 v2, s50\nv_mov_b32 v3, {4*i}\nbuffer_store_dword v2, v3, s[56:59], 0 offen")
    a.label(L)
VXG, VWG = 10, 14
VXR, VWR = 18, 30
FR = 64
ACC = 128

class G: pass
g = G(); g.nmi = 4; g.stage = 65536; g.xstep = 128; g.blkx = False
def cfg_big():
    g.nmi = 4; g.stage = 65536; g.xstep = 128; g.blkx = False
def cfg_n128(blkx):
    g.nmi = 2; g.stage = 49152; g.xstep = 4096 if blkx else 128; g.blkx = blkx

def acc(mi, ni):
    return ACC + (ni * 4 + mi) * 16

def issue_loads(a, buf):
    for i in range(4):
        a(f"""s_add_u32 m0, s26, {buf*g.stage + i*1024}
        s_nop 0
        buffer_load_dwordx4 v{VXG+i}, s[8:11], s23 offen lds""")
    for i in range(4 if g.nmi == 4 else 2):
        a(f"""s_add_u32 m0, s{26 if g.nmi == 4 else 34}, {buf*g.stage + 32768 + i*1024}
        s_nop 0
        buffer_load_dwordx4 v{VWG+i}, s[12:15], s24 offen lds""")
    a(f"""s_add_u32 s23, s23, {g.xstep}
    s_add_u32 s24, s24, s25""")

def read_frags(a, buf, kk, st, perm):
    b = FR + 24 * st
    for ni in range(2):
        for u in range(2):
            a(f"ds_read_b64_tr_b16 {vr(b+16+4*ni+2*u,2)}, v{VWR+2*buf+ni} offset:{kk*4096 + u*(2048 if perm else 1024)}")
    for mi in range(g.nmi):
        a(f"ds_read_b128 {vr(b+4*mi)}, v{VXR+4*buf+kk} offset:{mi*4096}")

def compute(a, buf, orient, perm):
    read_frags(a, buf, 0, 0, perm)
    for kk in range(4):
        st = kk & 1
        if kk < 3:
            read_frags(a, buf, kk + 1, st ^ 1, perm)
        b = FR + 24 * st
        for mi in range(g.nmi):
            a(f"s_waitcnt lgkmcnt({(4 + g.nmi if kk < 3 else 0) + g.nmi - 1 - mi})")
            for ni in range(2):
                X, W = b + 4 * mi, b + 16 + 4 * ni
                A, B = (W, X) if orient == 'T' else (X, W)
                d = acc(mi, ni)
                a(f"v_mfma_f32_32x32x16_bf16 {vr(d,16)}, {vr(A)}, {vr(B)}, {vr(d,16)}")

def mainloop3(a, orient, perm):
    issue_loads(a, 0); issue_loads(a, 1)
    L, Le = a.uniq("gl"), a.uniq("ge")
    a.label(L)
    for b in range(3):
        Lw, Ln = a.uniq("gw"), a.uniq("gn")
        a(f"s_cmp_gt_u32 s22, 1\ns_cbranch_scc1 {Lw}\ns_waitcnt vmcnt(0)")
        a.label(Lw)
        a(f"s_waitcnt vmcnt(6)\ns_barrier\ns_cmp_le_u32 s22, 2\ns_cbranch_scc1 {Ln}")
        issue_loads(a, (b + 2) % 3)
        a.label(Ln)
        compute(a, b, orient, perm)
        a(f"s_sub_u32 s22, s22, 1\ns_cmp_eq_u32 s22, 0")
        a(f"s_cbranch_scc1 {Le}" if b < 2 else f"s_cbranch_scc0 {L}")
    a.label(Le)
    a("s_nop 15")

def mainloop(a, orient, perm=False):
    if g.nmi == 2: return mainloop3(a, orient, perm)
    stamp(a, 1)
    issue_loads(a, 0)
    L, Lskip = a.uniq("gl"), a.uniq("gs")
    if TS:
        a("s_waitcnt vmcnt(0)\ns_barrier"); stamp(a, 2)
    a.label(L)
    a("s_waitcnt vmcnt(0)\ns_barrier")
    issue_loads(a, 1)
    compute(a, 0, orient, perm)
    a("s_waitcnt vmcnt(0)\ns_barrier")
    a(f"s_sub_u32 s22, s22, 1\ns_cmp_eq_u32 s22, 0\ns_cbranch_scc1 {Lskip}")
    issue_loads(a, 0)
    a.label(Lskip)
    compute(a, 1, orient, perm)
    a(f"s_cmp_lg_u32 s22, 0\ns_cbranch_scc1 {L}")
    a("s_nop 15")
    stamp(a, 3)

def setup(a, perm=False):
    a("""v_and_b32 v1, 63, v0
    v_lshrrev_b32 v2, 6, v0
    s_nop 0
    v_readfirstlane_b32 s27, v2
    s_lshl_b32 s26, s27, 12
    """ + ("s_lshr_b32 s28, s27, 2\ns_and_b32 s29, s27, 3" if g.nmi == 4 else "s_lshr_b32 s28, s27, 1\ns_and_b32 s29, s27, 1\ns_lshl_b32 s34, s27, 11") + """
    v_lshrrev_b32 v2, 3, v1
    v_and_b32 v3, 7, v1
    v_lshrrev_b32 v4, 4, v1
    v_and_b32 v5, 15, v1""")
    for i in range(4):
        a(f"""s_lshl_b32 s36, s27, 5
        s_add_u32 s36, s36, {i*8}
        s_add_u32 s36, s36, s30
        v_add_u32 v6, s36, v2
        v_add_u32 v7, {(i&1)*4}, v4
        v_xor_b32 v7, v7, v3""")
        if g.blkx:
            a(f"""v_lshrrev_b32 v9, 5, v6
            v_lshlrev_b32 v9, 18, v9
            v_and_b32 v6, 31, v6
            v_lshl_add_u32 v9, v6, 5, v9
            v_lshrrev_b32 v6, 1, v7
            v_lshl_add_u32 v9, v6, 10, v9
            v_and_b32 v7, 1, v7
            v_lshl_add_u32 v9, v7, 4, v9
            v_add_u32 v{VXG+i}, s41, v9""")
        else:
            a(f"""v_mul_lo_u32 v6, v6, s20
            v_lshlrev_b32 v7, 4, v7
            v_add3_u32 v{VXG+i}, v6, v7, s41""")
    a("""v_lshlrev_b32 v7, 2, v4
    v_xor_b32 v7, v7, v5
    v_lshlrev_b32 v7, 4, v7""")
    if g.nmi == 4:
        a("""s_lshl_b32 s37, s28, 7
        s_add_u32 s37, s37, s31
        s_lshl_b32 s37, s37, 1""")
    else:
        a("s_lshl_b32 s37, s31, 1")
    for i in range(4 if g.nmi == 4 else 2):
        a(f"""s_lshl_b32 s36, {'s29, 4' if g.nmi == 4 else 's27, 3'}
        s_add_u32 s36, s36, {i*4}
        v_add_u32 v6, s36, v4
        v_mul_lo_u32 v6, v6, s21
        v_add3_u32 v{VWG+i}, v6, v7, s37""")
    a("""v_and_b32 v6, 31, v1
    v_lshrrev_b32 v8, 5, v1
    v_bfe_u32 v7, v6, 1, 3
    v_xor_b32 v7, v7, v8
    v_lshlrev_b32 v6, 7, v6
    s_lshl_b32 s36, s28, """ + ("14" if g.nmi == 4 else "13") + """
    v_add_u32 v6, s36, v6""")
    for kk in range(4):
        a(f"""v_xor_b32 v9, {2*kk}, v7
        v_lshl_add_u32 v{VXR+kk}, v9, 4, v6
        v_add_u32 v{VXR+4+kk}, {g.stage}, v{VXR+kk}""")
        if g.nmi == 2: a(f"v_add_u32 v{VXR+8+kk}, {2*g.stage}, v{VXR+kk}")
    a(f"""v_bfe_u32 v6, v1, 2, 2
    v_and_b32 v7, 3, v1
    v_bfe_u32 v9, v1, 4, 1
    v_lshlrev_b32 v40, {2 if perm else 3}, v8
    v_add_u32 v40, v40, v6
    v_lshlrev_b32 v40, 8, v40
    v_lshrrev_b32 v41, 1, v7
    v_lshl_add_u32 v41, v9, 1, v41
    s_and_b32 s36, s29, 1
    s_lshl_b32 s36, s36, 3
    v_add_u32 v41, s36, v41
    v_lshlrev_b32 v42, 2, v6
    v_xor_b32 v41, v41, v42
    v_and_b32 v7, 1, v7
    v_lshl_add_u32 v40, v7, 3, v40
    s_lshr_b32 s36, s29, 1
    s_lshl_b32 s36, s36, 14
    s_add_u32 s36, s36, 32768
    v_add_u32 v40, s36, v40""")
    for ni in range(2):
        a(f"""v_xor_b32 v42, {4*ni}, v41
        v_lshl_add_u32 v{VWR+ni}, v42, 4, v40
        v_add_u32 v{VWR+2+ni}, {g.stage}, v{VWR+ni}""")
        if g.nmi == 2: a(f"v_add_u32 v{VWR+4+ni}, {2*g.stage}, v{VWR+ni}")
    for ni in range(2):
        for mi in range(g.nmi):
            for r in range(16):
                a(f"v_mov_b32 v{acc(mi, ni)+r}, 0")

def cvt8(a, dst, src, scale=False):
    if scale:
        for r in range(8):
            a(f"v_mul_f32 v{src+r}, s40, v{src+r}")
    for r in range(4):
        a(f"v_cvt_pk_bf16_f32 v{dst+r}, v{src+2*r}, v{src+2*r+1}")

def epi_rowmajor_perm(a, ldo, scale):
    a(f"""v_and_b32 v2, 31, v1
    v_lshlrev_b32 v2, 5, v2
    v_lshl_add_u32 v2, v8, 4, v2
    s_lshl_b32 s36, s28, 7
    s_add_u32 s36, s36, s30
    s_mul_i32 s36, s36, {ldo}
    s_add_u32 s36, s36, s33
    s_lshl_b32 s37, s29, 12
    s_add_u32 s36, s36, s37
    v_add_u32 v2, s36, v2
    v_add_u32 v3, {32*ldo}, v2
    v_add_u32 v4, {64*ldo}, v2
    v_add_u32 v5, {96*ldo}, v2""")
    k = 0
    for mi in range(4):
        for ni in range(2):
            for t in range(2):
                T = 32 + 4 * (k & 7); k += 1
                cvt8(a, T, acc(mi, ni) + 8 * t, scale)
                a(f"buffer_store_dwordx4 {vr(T)}, v{2+mi}, s[16:19], 0 offen offset:{(ni*2+t)*1024}")

def epi_colmajor_blk(a):
    a(f"""v_and_b32 v2, 31, v1
    v_lshlrev_b32 v2, 5, v2
    v_lshl_add_u32 v2, v8, 4, v2
    s_lshl_b32 s36, s29, 18
    s_add_u32 s36, s36, s33
    s_lshl_b32 s37, s28, 7
    s_add_u32 s37, s37, s30
    s_lshl_b32 s37, s37, 6
    s_add_u32 s36, s36, s37
    v_add_u32 v2, s36, v2
    v_add_u32 v3, 4096, v2
    v_add_u32 v4, {32*4096}, v2
    v_add_u32 v5, {32*4096+4096}, v2""")
    k = 0
    for ni in range(2):
        for mi in range(4):
            for t in range(2):
                T = 32 + 4 * (k & 7); k += 1
                cvt8(a, T, acc(mi, ni) + 8 * t)
                a(f"buffer_store_dwordx4 {vr(T)}, v{2+ni*2+(mi>>1)}, s[16:19], 0 offen offset:{((mi&1)*2+t)*1024}")

def epi_colmajor_perm(a):
    a(f"""v_and_b32 v2, 31, v1
    s_lshl_b32 s36, s29, 6
    v_add_u32 v2, s36, v2
    v_lshlrev_b32 v2, 12, v2
    s_lshl_b32 s36, s28, 7
    s_add_u32 s36, s36, s30
    s_lshl_b32 s36, s36, 1
    s_add_u32 s36, s36, s33
    v_lshlrev_b32 v3, 4, v8
    v_add3_u32 v2, v2, v3, s36
    v_add_u32 v3, {32*4096}, v2""")
    k = 0
    for ni in range(2):
        for mi in range(4):
            for t in range(2):
                T = 32 + 4 * (k & 7); k += 1
                cvt8(a, T, acc(mi, ni) + 8 * t)
                a(f"buffer_store_dwordx4 {vr(T)}, v{2+ni}, s[16:19], 0 offen offset:{mi*64+t*32}")

def epi_compact(a):
    a(f"""v_and_b32 v2, 31, v1
    s_lshl_b32 s36, s28, 7
    s_add_u32 s36, s36, s30
    v_add_u32 v2, s36, v2
    v_mul_u32_u24 v2, 40, v2
    v_add_u32 v2, s33, v2
    v_add_u32 v3, s35, v8""")
    k = 0
    for ni in range(2):
        for j in range(4):
            a(f"""v_add_u32 v4, {ni*8+2*j}, v3
            v_mul_u32_u24 v5, 0xcccd, v4
            v_lshrrev_b32 v5, 18, v5
            v_mul_u32_u24 v6, 5, v5
            v_sub_u32 v6, v4, v6
            v_mul_u32_u24 v5, 0x14000, v5
            v_lshl_add_u32 v5, v6, 3, v5
            v_add_u32 v{10+k}, v5, v2""")
            for mi in range(4):
                s = acc(mi, ni) + 4 * j
                T = 32 + 2 * ((4 * k + mi) & 15)
                for r in range(4):
                    a(f"v_mul_f32 v{s+r}, s40, v{s+r}")
                a(f"""v_cvt_pk_bf16_f32 v{T}, v{s}, v{s+1}
                v_cvt_pk_bf16_f32 v{T+1}, v{s+2}, v{s+3}
                buffer_store_dwordx2 {vr(T,2)}, v{10+k}, s[16:19], 0 offen offset:{mi*1280}""")
            k += 1

def load_ptr(a, dst, slot):
    a(f"s_load_dwordx2 s[{dst}:{dst+1}], s[0:1], {slot*8}")

def tile_decode(a, base, ntb):
    a(f"""s_sub_u32 s35, s2, {base}
    s_and_b32 s36, s35, 1
    s_lshl_b32 s36, s36, 2
    s_bfe_u32 s37, s35, 0x20003
    s_add_u32 s30, s36, s37
    s_lshl_b32 s30, s30, 8
    s_bfe_u32 s36, s35, 0x20001
    s_mul_i32 s36, s36, {ntb}
    s_lshr_b32 s37, s35, 5
    s_add_u32 s35, s36, s37
    s_lshl_b32 s31, s35, 8""")

def gen_k1(a):
    name = "proj_kernel"
    kernel_header(a, name)
    cfg_big()
    cB = f32(128 ** -0.5 * LOG2E); cA = f32(20 ** -0.5 * LOG2E)
    stamp(a, 0)
    if TS: a("s_memrealtime s[54:55]\ns_waitcnt lgkmcnt(0)\ns_mov_b32 s70, s54")
    a("""s_cmp_ge_u32 s2, 448
    s_cbranch_scc1 k1_end
    s_load_dwordx2 s[42:43], s[0:1], 88
    s_mov_b32 s23, 0
    s_mov_b32 s24, 0
    s_mov_b32 s41, 0
    s_mov_b32 s40, 1.0
    s_mov_b32 s21, 8192
    s_mov_b32 s25, 524288
    s_cmp_ge_u32 s2, 192
    s_cbranch_scc1 k1_p2
    s_cmp_ge_u32 s2, 128
    s_cbranch_scc1 k1_pa""")
    load_ptr(a, 4, 3); load_ptr(a, 6, 5)
    tile_decode(a, 0, 4)
    a(f"""s_mov_b32 s20, 1280
    s_mov_b32 s22, 5
    s_mov_b32 s40, {cB}
    s_mov_b32 s32, 0
    s_lshl_b32 s33, s31, 6
    s_add_u32 s33, s33, {WS_QB}
    s_waitcnt lgkmcnt(0)""")
    srd(a, 8, 4, 2048*640*2); srd(a, 12, 6, 640*4096*2); srd(a, 16, 42, WS_SIZE)
    a("s_branch k1_T")
    a.label("k1_p2")
    load_ptr(a, 4, 4)
    a(f"""s_mov_b32 s20, 1024
    s_mov_b32 s22, 4
    s_cmp_ge_u32 s2, 320
    s_cbranch_scc1 k1_p3""")
    load_ptr(a, 6, 6)
    tile_decode(a, 192, 4)
    a(f"""s_mov_b32 s32, 0
    s_lshl_b32 s33, s31, 6
    s_add_u32 s33, s33, {WS_KB}
    s_waitcnt lgkmcnt(0)""")
    srd(a, 8, 4, 2048*512*2); srd(a, 12, 6, 512*4096*2); srd(a, 16, 42, WS_SIZE)
    a("s_branch k1_T")
    a.label("k1_p3")
    load_ptr(a, 6, 7)
    tile_decode(a, 320, 4)
    a(f"""s_lshl_b32 s33, s31, 12
    s_add_u32 s33, s33, {WS_VTB}
    s_mov_b32 s32, 0
    s_waitcnt lgkmcnt(0)""")
    srd(a, 8, 4, 2048*512*2); srd(a, 12, 6, 512*4096*2); srd(a, 16, 42, WS_SIZE)
    a("s_branch k1_N")
    a.label("k1_pa")
    load_ptr(a, 4, 0); load_ptr(a, 6, 1)
    tile_decode(a, 128, 2)
    a(f"""s_mov_b32 s20, 1280
    s_mov_b32 s21, 3840
    s_mov_b32 s25, {64*3840}
    s_mov_b32 s22, 5
    s_mov_b32 s32, 1
    s_waitcnt lgkmcnt(0)""")
    srd(a, 8, 4, 2048*640*2); srd(a, 12, 6, 640*1920*2); srd(a, 16, 42, WS_SIZE)
    a(f"""s_cmp_lt_u32 s35, 5
    s_cbranch_scc1 k1_T
    s_sub_u32 s33, s31, 1280
    s_lshl_b32 s33, s33, 12
    s_add_u32 s33, s33, {WS_VTA}""")
    a.label("k1_N")
    setup(a)
    mainloop(a, 'N')
    a("""s_cmp_eq_u32 s32, 0
    s_cbranch_scc1 k1_Nst
    s_lshl_b32 s36, s29, 6
    s_add_u32 s36, s36, s31
    s_cmp_ge_u32 s36, 1920
    s_cbranch_scc1 k1_end""")
    epi_colmajor_perm(a)
    a("s_endpgm")
    a.label("k1_Nst")
    epi_colmajor_blk(a)
    stamp(a, 4)
    stamp_out(a, 5)
    a("s_endpgm")
    a.label("k1_T")
    setup(a)
    mainloop(a, 'T')
    a("s_cmp_eq_u32 s32, 1\ns_cbranch_scc1 k1_compact")
    epi_rowmajor_perm(a, 8192, True)
    stamp(a, 4)
    stamp_out(a, 5)
    a("s_endpgm")
    a.label("k1_compact")
    a(f"""s_lshl_b32 s35, s29, 6
    s_add_u32 s35, s35, s31
    s_mov_b32 s33, {WS_QA}
    s_mov_b32 s40, {cA}
    s_cmp_lt_u32 s35, 640
    s_cbranch_scc1 k1_cq
    s_sub_u32 s35, s35, 640
    s_mov_b32 s33, {WS_KA}
    s_mov_b32 s40, 1.0""")
    a.label("k1_cq")
    a("s_lshr_b32 s35, s35, 2")
    epi_compact(a)
    stamp(a, 4)
    stamp_out(a, 5)
    a.label("k1_end")
    a("s_endpgm")
    return kernel_desc(name, 256)

def epi_out(a, fp32):
    esz = 4 if fp32 else 2
    a(f"""v_and_b32 v2, 31, v1
    s_lshl_b32 s36, s28, 6
    s_add_u32 s36, s36, s30
    v_add_u32 v2, s36, v2
    v_mul_u32_u24 v2, 2560, v2
    s_mul_i32 s36, s29, {64*esz}
    s_add_u32 s36, s36, s33
    v_mul_u32_u24 v3, {4*esz}, v8
    v_add3_u32 v2, v2, v3, s36
    v_add_u32 v3, {32*2560}, v2""")
    k = 0
    for ni in range(2):
        for mi in range(2):
            for j in range(4):
                s = acc(mi, ni) + 4 * j
                off = (ni * 32 + 8 * j) * esz
                if fp32:
                    a(f"buffer_store_dwordx4 {vr(s)}, v{2+mi}, s[16:19], 0 offen offset:{off}")
                else:
                    T = 32 + 2 * (k & 7); k += 1
                    a(f"""v_cvt_pk_bf16_f32 v{T}, v{s}, v{s+1}
                    v_cvt_pk_bf16_f32 v{T+1}, v{s+2}, v{s+3}
                    buffer_store_dwordx2 {vr(T,2)}, v{2+mi}, s[16:19], 0 offen offset:{off}""")

def gen_k3(a):
    name = "oproj_kernel"
    kernel_header(a, name)
    a("""s_cmp_ge_u32 s2, 200
    s_cbranch_scc1 k3_end
    s_load_dwordx2 s[42:43], s[0:1], 88
    s_mov_b32 s21, 1280
    s_mov_b32 s25, 81920
    s_mov_b32 s23, 0
    s_cmp_ge_u32 s2, 160
    s_cbranch_scc1 k3_p1""")
    load_ptr(a, 6, 8)
    a(f"""s_bfe_u32 s44, s2, 0x20001
    s_and_b32 s36, s2, 1
    s_lshl_b32 s36, s36, 2
    s_bfe_u32 s37, s2, 0x20003
    s_add_u32 s30, s36, s37
    s_lshl_b32 s30, s30, 8
    s_lshr_b32 s31, s2, 5
    s_lshl_b32 s31, s31, 7
    s_mov_b32 s20, 8192
    s_mov_b32 s22, 16
    s_lshl_b32 s41, s44, 16
    s_add_u32 s41, s41, {WS_CTX}
    s_mul_i32 s24, s44, {1024*1280}
    s_mul_i32 s33, s44, {2048*640*4}
    s_add_u32 s33, s33, {WS_PART}
    s_lshl_b32 s45, s31, 2
    s_add_u32 s33, s33, s45
    s_waitcnt lgkmcnt(0)""")
    srd(a, 8, 42, WS_SIZE); srd(a, 12, 6, 4096*640*2); srd(a, 16, 42, WS_SIZE)
    cfg_n128(True)
    setup(a, True)
    mainloop(a, 'T', True)
    epi_out(a, True)
    a("s_endpgm")
    a.label("k3_p1")
    load_ptr(a, 6, 2); load_ptr(a, 4, 9)
    a(f"""s_sub_u32 s35, s2, 160
    s_and_b32 s30, s35, 7
    s_lshl_b32 s30, s30, 8
    s_lshr_b32 s31, s35, 3
    s_lshl_b32 s31, s31, 7
    s_mov_b32 s20, 1280
    s_mov_b32 s22, 10
    s_mov_b32 s41, {WS_OA}
    s_mov_b32 s24, 0
    s_lshl_b32 s33, s31, 1
    s_waitcnt lgkmcnt(0)""")
    srd(a, 8, 42, WS_SIZE); srd(a, 12, 6, 640*640*2); srd(a, 16, 4, 2048*1280*2)
    cfg_n128(False)
    setup(a)
    mainloop(a, 'T')
    epi_out(a, False)
    a.label("k3_end")
    a("s_endpgm")
    return kernel_desc(name, 256)
```

```python
from common import *
import os

VXG, VWG, VXR, VWR = 10, 14, 18, 22
FR = 64
ACC = 128

def acc(i, j):
    return ACC + (i * 2 + j) * 16

XSTEP = [128]
def issue_loads(a, buf):
    for i in range(4):
        a(f"""s_add_u32 m0, s26, {buf*32768 + i*1024}
        s_nop 0
        buffer_load_dwordx4 v{VXG+i}, s[8:11], s23 offen lds""")
    for i in range(4):
        a(f"""s_add_u32 m0, s26, {buf*32768 + 16384 + i*1024}
        s_nop 0
        buffer_load_dwordx4 v{VWG+i}, s[12:15], s24 offen lds""")
    a(f"""s_add_u32 s23, s23, {XSTEP[0]}
    s_add_u32 s24, s24, s25""")

def read_frags(a, buf, kk, st, perm=False):
    b = FR + 16 * st
    for mi in range(2):
        a(f"ds_read_b128 {vr(b+4*mi)}, v{VXR+kk} offset:{buf*32768 + mi*4096}")
    for ni in range(2):
        for u in range(2):
            a(f"ds_read_b64_tr_b16 {vr(b+8+4*ni+2*u,2)}, v{VWR+ni} offset:{buf*32768 + 16384 + kk*4096 + u*(2048 if perm else 1024)}")

def compute(a, buf, orient, perm=False):
    read_frags(a, buf, 0, 0, perm)
    for kk in range(4):
        st = kk & 1
        if kk < 3:
            read_frags(a, buf, kk + 1, st ^ 1, perm)
            a("s_waitcnt lgkmcnt(6)")
        else:
            a("s_waitcnt lgkmcnt(0)")
        b = FR + 16 * st
        for i in range(2):
            for j in range(2):
                if orient == 'T':
                    A, B = b + 8 + 4 * i, b + 4 * j
                else:
                    A, B = b + 4 * i, b + 8 + 4 * j
                d = acc(i, j)
                a(f"v_mfma_f32_32x32x16_bf16 {vr(d,16)}, {vr(A)}, {vr(B)}, {vr(d,16)}")

def prefetch_setup(a):
    a(f"""v_and_b32 v27, 31, v1
    s_lshl_b32 s36, s27, 5
    v_add_u32 v28, s36, v27
    s_add_u32 s36, s36, s30
    v_add_u32 v27, s36, v27
    v_mul_lo_u32 v27, v27, s20
    v_lshlrev_b32 v29, 7, v8
    v_add3_u32 v27, v27, v29, s41
    v_lshrrev_b32 v29, 1, v28
    v_mul_lo_u32 v29, v29, s21
    v_and_b32 v28, 1, v28
    v_lshl_add_u32 v29, v28, 7, v29
    v_mul_lo_u32 v28, v8, s25
    s_lshl_b32 s37, s31, 1
    s_add_u32 s37, s37, s25
    v_add3_u32 v28, v28, v29, s37""")

PF = int(os.environ.get('GPF', '0'))
def mainloop(a, orient, perm=False):
    issue_loads(a, 0)
    if PF: prefetch_setup(a)
    L, Lskip = a.uniq("gl"), a.uniq("gs")
    a.label(L)
    a("s_waitcnt vmcnt(0)\ns_barrier")
    issue_loads(a, 1)
    if PF:
        a("""buffer_load_dword v29, v27, s[8:11], s23 offen offset:128
        buffer_load_dword v29, v28, s[12:15], s24 offen""")
    compute(a, 0, orient, perm)
    a(f"s_waitcnt vmcnt({2 if PF else 0})\ns_barrier")
    a(f"s_sub_u32 s22, s22, 1\ns_cmp_eq_u32 s22, 0\ns_cbranch_scc1 {Lskip}")
    issue_loads(a, 0)
    a.label(Lskip)
    compute(a, 1, orient, perm)
    a(f"s_cmp_lg_u32 s22, 0\ns_cbranch_scc1 {L}")
    a("s_nop 15")

def setup(a, perm=False):
    a("""v_and_b32 v1, 63, v0
    v_lshrrev_b32 v2, 6, v0
    s_nop 0
    v_readfirstlane_b32 s27, v2
    s_lshl_b32 s26, s27, 12
    s_lshr_b32 s28, s27, 1
    s_and_b32 s29, s27, 1
    v_lshrrev_b32 v2, 3, v1
    v_and_b32 v3, 7, v1
    v_lshrrev_b32 v4, 4, v1
    v_and_b32 v5, 15, v1""")
    for i in range(4):
        a(f"""s_lshl_b32 s36, s27, 5
        s_add_u32 s36, s36, {i*8}
        s_add_u32 s36, s36, s30
        v_add_u32 v6, s36, v2
        v_add_u32 v7, {(i&1)*4}, v4
        v_xor_b32 v7, v7, v3""")
        if perm:
            a(f"""v_lshrrev_b32 v9, 5, v6
            v_lshlrev_b32 v9, 18, v9
            v_and_b32 v6, 31, v6
            v_lshl_add_u32 v9, v6, 5, v9
            v_lshrrev_b32 v6, 1, v7
            v_lshl_add_u32 v9, v6, 10, v9
            v_and_b32 v7, 1, v7
            v_lshl_add_u32 v9, v7, 4, v9
            v_add_u32 v{VXG+i}, s41, v9""")
        else:
            a(f"""v_mul_lo_u32 v6, v6, s20
            v_lshlrev_b32 v7, 4, v7
            v_add3_u32 v{VXG+i}, v6, v7, s41""")
    a("""v_lshlrev_b32 v7, 2, v4
    v_xor_b32 v7, v7, v5
    v_lshlrev_b32 v7, 4, v7
    s_lshl_b32 s37, s31, 1""")
    for i in range(4):
        a(f"""s_lshl_b32 s36, s27, 4
        s_add_u32 s36, s36, {i*4}
        v_add_u32 v6, s36, v4
        v_mul_lo_u32 v6, v6, s21
        v_add3_u32 v{VWG+i}, v6, v7, s37""")
    a("""v_and_b32 v6, 31, v1
    v_lshrrev_b32 v8, 5, v1
    s_lshl_b32 s36, s28, 6
    v_add_u32 v6, s36, v6
    v_bfe_u32 v7, v6, 1, 3
    v_xor_b32 v7, v7, v8
    v_lshlrev_b32 v6, 7, v6""")
    for kk in range(4):
        a(f"""v_xor_b32 v9, {2*kk}, v7
        v_lshl_add_u32 v{VXR+kk}, v9, 4, v6""")
    a(f"""v_bfe_u32 v6, v1, 2, 2
    v_and_b32 v7, 3, v1
    v_bfe_u32 v9, v1, 4, 1
    v_lshlrev_b32 v24, {2 if perm else 3}, v8
    v_add_u32 v24, v24, v6
    v_lshlrev_b32 v24, 8, v24
    v_lshrrev_b32 v25, 1, v7
    v_lshl_add_u32 v25, v9, 1, v25
    s_lshl_b32 s36, s29, 3
    v_add_u32 v25, s36, v25
    v_lshlrev_b32 v26, 2, v6
    v_xor_b32 v25, v25, v26
    v_and_b32 v7, 1, v7
    v_lshl_add_u32 v24, v7, 3, v24""")
    for ni in range(2):
        a(f"""v_xor_b32 v26, {4*ni}, v25
        v_lshl_add_u32 v{VWR+ni}, v26, 4, v24""")
    for r in range(64):
        a(f"v_mov_b32 v{ACC+r}, 0")

def cvt8(a, dst, src, scale=False):
    if scale:
        for r in range(8):
            a(f"v_mul_f32 v{src+r}, s40, v{src+r}")
    for r in range(4):
        a(f"v_cvt_pk_bf16_f32 v{dst+r}, v{src+2*r}, v{src+2*r+1}")

def epi_rowmajor_perm(a, ldo, scale):
    a(f"""v_and_b32 v2, 31, v1
    s_lshl_b32 s36, s28, 6
    s_add_u32 s36, s36, s30
    v_add_u32 v2, s36, v2
    v_mul_u32_u24 v2, {ldo}, v2
    s_lshl_b32 s36, s29, 7
    s_add_u32 s36, s36, s33
    v_lshlrev_b32 v3, 4, v8
    v_add3_u32 v2, v2, v3, s36
    v_add_u32 v3, {32*ldo}, v2""")
    k = 0
    for ni in range(2):
        for mi in range(2):
            for t in range(2):
                T = 24 + 4 * (k & 3); k += 1
                cvt8(a, T, acc(ni, mi) + 8 * t, scale)
                a(f"buffer_store_dwordx4 {vr(T)}, v{2+mi}, s[16:19], 0 offen offset:{ni*64+t*32}")

def epi_colmajor_perm(a):
    a(f"""v_and_b32 v2, 31, v1
    s_lshl_b32 s36, s29, 6
    v_add_u32 v2, s36, v2
    v_lshlrev_b32 v2, 12, v2
    s_lshl_b32 s36, s28, 6
    s_add_u32 s36, s36, s30
    s_lshl_b32 s36, s36, 1
    s_add_u32 s36, s36, s33
    v_lshlrev_b32 v3, 4, v8
    v_add3_u32 v2, v2, v3, s36
    v_add_u32 v3, {32*4096}, v2""")
    k = 0
    for mi in range(2):
        for ni in range(2):
            for t in range(2):
                T = 24 + 4 * (k & 3); k += 1
                cvt8(a, T, acc(mi, ni) + 8 * t)
                a(f"buffer_store_dwordx4 {vr(T)}, v{2+ni}, s[16:19], 0 offen offset:{mi*64+t*32}")

def epi_compact(a):
    a(f"""v_and_b32 v2, 31, v1
    s_lshl_b32 s36, s28, 6
    s_add_u32 s36, s36, s30
    v_add_u32 v2, s36, v2
    v_mul_u32_u24 v2, 40, v2
    v_add_u32 v2, s33, v2
    s_lshl_b32 s36, s29, 4
    s_add_u32 s36, s36, s35
    v_add_u32 v3, s36, v8""")
    k = 0
    for ni in range(2):
        for j in range(4):
            a(f"""v_add_u32 v4, {ni*8+2*j}, v3
            v_mul_u32_u24 v5, 0xcccd, v4
            v_lshrrev_b32 v5, 18, v5
            v_mul_u32_u24 v6, 5, v5
            v_sub_u32 v6, v4, v6
            v_mul_u32_u24 v5, 0x14000, v5
            v_lshl_add_u32 v5, v6, 3, v5
            v_add_u32 v{40+k}, v5, v2""")
            for mi in range(2):
                s = acc(ni, mi) + 4 * j
                T = 24 + 2 * ((2 * k + mi) & 7)
                for r in range(4):
                    a(f"v_mul_f32 v{s+r}, s40, v{s+r}")
                a(f"""v_cvt_pk_bf16_f32 v{T}, v{s}, v{s+1}
                v_cvt_pk_bf16_f32 v{T+1}, v{s+2}, v{s+3}
                buffer_store_dwordx2 {vr(T,2)}, v{40+k}, s[16:19], 0 offen offset:{mi*1280}""")
            k += 1

def epi_out(a, fp32):
    esz = 4 if fp32 else 2
    a(f"""v_and_b32 v2, 31, v1
    s_lshl_b32 s36, s28, 6
    s_add_u32 s36, s36, s30
    v_add_u32 v2, s36, v2
    v_mul_u32_u24 v2, 2560, v2
    s_mul_i32 s36, s29, {64*esz}
    s_add_u32 s36, s36, s33
    v_mul_u32_u24 v3, {4*esz}, v8
    v_add3_u32 v2, v2, v3, s36
    v_add_u32 v3, {32*2560}, v2""")
    k = 0
    for ni in range(2):
        for mi in range(2):
            for j in range(4):
                s = acc(ni, mi) + 4 * j
                off = (ni * 32 + 8 * j) * esz
                if fp32:
                    a(f"buffer_store_dwordx4 {vr(s)}, v{2+mi}, s[16:19], 0 offen offset:{off}")
                else:
                    T = 24 + 2 * (k & 7); k += 1
                    a(f"""v_cvt_pk_bf16_f32 v{T}, v{s}, v{s+1}
                    v_cvt_pk_bf16_f32 v{T+1}, v{s+2}, v{s+3}
                    buffer_store_dwordx2 {vr(T,2)}, v{2+mi}, s[16:19], 0 offen offset:{off}""")


def load_ptr(a, dst, slot):
    a(f"s_load_dwordx2 s[{dst}:{dst+1}], s[0:1], {slot*8}")

def tile_decode(a, base):
    a(f"""s_sub_u32 s35, s2, {base}
    s_and_b32 s30, s35, 15
    s_lshl_b32 s30, s30, 7
    s_lshr_b32 s35, s35, 4
    s_lshl_b32 s31, s35, 7""")

def gen_k1(a):
    name = "proj_kernel"
    kernel_header(a, name)
    cB = f32(128 ** -0.5 * LOG2E); cA = f32(20 ** -0.5 * LOG2E)
    a("""s_cmp_ge_u32 s2, 1776
    s_cbranch_scc1 k1_end
    s_load_dwordx2 s[42:43], s[0:1], 88
    s_mov_b32 s23, 0
    s_mov_b32 s24, 0
    s_mov_b32 s41, 0
    s_mov_b32 s40, 1.0
    s_cmp_ge_u32 s2, 240
    s_cbranch_scc1 k1_p1""")
    load_ptr(a, 4, 0); load_ptr(a, 6, 1)
    tile_decode(a, 0)
    a(f"""s_mov_b32 s20, 1280
    s_mov_b32 s21, 3840
    s_mov_b32 s25, {64*3840}
    s_mov_b32 s22, 5
    s_waitcnt lgkmcnt(0)""")
    srd(a, 8, 4, 2048*640*2); srd(a, 12, 6, 640*1920*2); srd(a, 16, 42, WS_SIZE)
    a(f"""s_cmp_ge_u32 s35, 10
    s_cbranch_scc1 k1_a_v
    s_mov_b32 s32, 1
    s_mov_b32 s33, {WS_KA}
    s_sub_u32 s35, s35, 5
    s_cmp_ge_i32 s35, 0
    s_cbranch_scc1 k1_a_k
    s_add_u32 s35, s35, 5
    s_mov_b32 s33, {WS_QA}
    s_mov_b32 s40, {cA}""")
    a.label("k1_a_k")
    a("s_lshl_b32 s35, s35, 5\ns_branch k1_T")
    a.label("k1_a_v")
    a(f"""s_sub_u32 s35, s35, 10
    s_lshl_b32 s33, s35, 19
    s_add_u32 s33, s33, {WS_VTA}
    s_branch k1_N""")
    a.label("k1_p1")
    a("s_cmp_ge_u32 s2, 752\ns_cbranch_scc1 k1_p2")
    load_ptr(a, 4, 3); load_ptr(a, 6, 5)
    tile_decode(a, 240)
    a(f"""s_mov_b32 s20, 1280
    s_mov_b32 s21, 8192
    s_mov_b32 s25, {64*8192}
    s_mov_b32 s22, 5
    s_mov_b32 s40, {cB}
    s_mov_b32 s32, 0
    s_lshl_b32 s33, s31, 1
    s_add_u32 s33, s33, {WS_QB}
    s_waitcnt lgkmcnt(0)""")
    srd(a, 8, 4, 2048*640*2); srd(a, 12, 6, 640*4096*2); srd(a, 16, 42, WS_SIZE)
    a("s_branch k1_T")
    a.label("k1_p2")
    load_ptr(a, 4, 4)
    a(f"""s_mov_b32 s20, 1024
    s_mov_b32 s21, 8192
    s_mov_b32 s25, {64*8192}
    s_mov_b32 s22, 4
    s_cmp_ge_u32 s2, 1264
    s_cbranch_scc1 k1_p3""")
    load_ptr(a, 6, 6)
    tile_decode(a, 752)
    a(f"""s_mov_b32 s32, 0
    s_lshl_b32 s33, s31, 1
    s_add_u32 s33, s33, {WS_KB}
    s_waitcnt lgkmcnt(0)""")
    srd(a, 8, 4, 2048*512*2); srd(a, 12, 6, 512*4096*2); srd(a, 16, 42, WS_SIZE)
    a("s_branch k1_T")
    a.label("k1_p3")
    load_ptr(a, 6, 7)
    tile_decode(a, 1264)
    a(f"""s_lshl_b32 s33, s31, 12
    s_add_u32 s33, s33, {WS_VTB}
    s_waitcnt lgkmcnt(0)""")
    srd(a, 8, 4, 2048*512*2); srd(a, 12, 6, 512*4096*2); srd(a, 16, 42, WS_SIZE)
    a.label("k1_N")
    setup(a)
    mainloop(a, 'N')
    epi_colmajor_perm(a)
    a("s_endpgm")
    a.label("k1_T")
    setup(a)
    mainloop(a, 'T')
    a("s_cmp_eq_u32 s32, 1\ns_cbranch_scc1 k1_compact")
    epi_rowmajor_perm(a, 8192, True)
    a("s_endpgm")
    a.label("k1_compact")
    epi_compact(a)
    a.label("k1_end")
    a("s_endpgm")
    return kernel_desc(name, 192)

def gen_k3(a):
    name = "oproj_kernel"
    kernel_header(a, name)
    a("""s_cmp_ge_u32 s2, 400
    s_cbranch_scc1 k3_end
    s_load_dwordx2 s[42:43], s[0:1], 88
    s_mov_b32 s21, 1280
    s_mov_b32 s25, 81920
    s_mov_b32 s23, 0
    s_cmp_ge_u32 s2, 320
    s_cbranch_scc1 k3_p1""")
    load_ptr(a, 6, 8)
    a(f"""s_mul_hi_u32 s44, s2, {(1<<32)//80 + 1}
    s_mul_i32 s45, s44, 80
    s_sub_u32 s35, s2, s45
    s_and_b32 s30, s35, 15
    s_lshl_b32 s30, s30, 7
    s_lshr_b32 s35, s35, 4
    s_lshl_b32 s31, s35, 7
    s_mov_b32 s20, 8192
    s_mov_b32 s22, 8
    s_lshl_b32 s41, s44, 16
    s_add_u32 s41, s41, {WS_CTX}
    s_mul_i32 s24, s44, {1024*1280}
    s_mul_i32 s33, s44, {2048*640*4}
    s_add_u32 s33, s33, {WS_PART}
    s_lshl_b32 s45, s31, 2
    s_add_u32 s33, s33, s45
    s_waitcnt lgkmcnt(0)""")
    srd(a, 8, 42, WS_SIZE); srd(a, 12, 6, 4096*640*2); srd(a, 16, 42, WS_SIZE)
    setup(a, True)
    XSTEP[0] = 4096
    mainloop(a, 'T', True)
    XSTEP[0] = 128
    epi_out(a, True)
    a("s_endpgm")
    a.label("k3_p1")
    load_ptr(a, 6, 2); load_ptr(a, 4, 9)
    tile_decode(a, 320)
    a(f"""s_mov_b32 s20, 1280
    s_mov_b32 s22, 5
    s_mov_b32 s41, {WS_OA}
    s_mov_b32 s24, 0
    s_lshl_b32 s33, s31, 1
    s_waitcnt lgkmcnt(0)""")
    srd(a, 8, 42, WS_SIZE); srd(a, 12, 6, 640*640*2); srd(a, 16, 4, 2048*1280*2)
    setup(a)
    mainloop(a, 'T')
    epi_out(a, False)
    a.label("k3_end")
    a("s_endpgm")
    return kernel_desc(name, 192)

def gen_k4(a):
    name = "reduce_kernel"
    kernel_header(a, name)
    a(f"""s_cmp_ge_u32 s2, 640
    s_cbranch_scc1 k4_end
    s_load_dwordx2 s[4:5], s[0:1], 72
    s_load_dwordx2 s[6:7], s[0:1], 88
    s_mul_hi_u32 s3, s2, {(1<<32)//10 + 1}
    s_mul_i32 s20, s3, 10
    s_sub_u32 s20, s2, s20
    v_and_b32 v1, 7, v0
    v_lshrrev_b32 v4, 3, v0
    s_mul_i32 s21, s3, 81920
    s_lshl_b32 s22, s20, 13
    s_add_u32 s22, s22, s21
    v_lshlrev_b32 v2, 10, v1
    v_lshl_add_u32 v2, v4, 5, v2
    v_add_u32 v2, s22, v2
    s_lshl_b32 s22, s20, 7
    s_add_u32 s22, s22, s21
    v_mul_u32_u24 v3, 2560, v4
    v_lshl_add_u32 v3, v1, 4, v3
    v_add_u32 v3, s22, v3
    s_waitcnt lgkmcnt(0)""")
    srd(a, 8, 4, 2048*1280*2); srd(a, 12, 6, WS_SIZE)
    for ks in range(4):
        a(f"""s_mov_b32 s{20+ks}, {WS_PART + ks*2048*640*4}
        buffer_load_dwordx4 {vr(8+8*ks)}, v2, s[12:15], s{20+ks} offen
        buffer_load_dwordx4 {vr(12+8*ks)}, v2, s[12:15], s{20+ks} offen offset:16""")
    a("s_waitcnt vmcnt(0)")
    for r in range(8):
        a(f"""v_add_f32 v{8+r}, v{8+r}, v{16+r}
        v_add_f32 v{24+r}, v{24+r}, v{32+r}""")
    for r in range(8):
        a(f"v_add_f32 v{8+r}, v{8+r}, v{24+r}")
    for r in range(4):
        a(f"v_cvt_pk_bf16_f32 v{40+r}, v{8+2*r}, v{9+2*r}")
    a("buffer_store_dwordx4 v[40:43], v3, s[8:11], 0 offen offset:1280")
    a.label("k4_end")
    a("s_endpgm")
    return kernel_desc(name, 48)
```

```python
from common import *
import os
TS1 = int(os.environ.get('TS', '0'))
TS3 = int(os.environ.get('TS3', '0'))
TS = 0
EXP = int(os.environ.get('EXP', '0'))
def stamp(a, i):
    if TS: a(f"s_memtime s[50:51]\ns_waitcnt lgkmcnt(0)\ns_mov_b32 s{60+i}, s50")
def stamp_out(a, n):
    if not TS: return
    a("s_waitcnt vmcnt(0)")
    stamp(a, n)
    L = a.uniq('tso')
    a(f"""s_memrealtime s[54:55]
    s_waitcnt lgkmcnt(0)
    v_mov_b32 v4, s70
    v_mov_b32 v5, s54
    s_lshl_b32 s50, s2, 3
    s_add_u32 s50, s50, {200*MB}
    v_mov_b32 v3, s50
    buffer_store_dwordx2 v[4:5], v3, s[16:19], 0 offen""")
    a(f"s_cmp_lg_u32 s2, {TS-1}\ns_cbranch_scc1 {L}\ns_cmp_lg_u32 s27, 0\ns_cbranch_scc1 {L}\ns_load_dwordx2 s[52:53], s[0:1], 80\ns_waitcnt lgkmcnt(0)")
    srd(a, 56, 52, 256)
    for i in range(n + 1):
        a(f"s_sub_u32 s50, s{60+i}, s60\nv_mov_b32 v2, s50\nv_mov_b32 v3, {4*i}\nbuffer_store_dword v2, v3, s[56:59], 0 offen")
    a.label(L)
VXG, VWG = 10, 14
VXR, VWR = 18, 30
FR = 64
ACC = 128

class G: pass
g = G(); g.nmi = 4; g.stage = 65536; g.xstep = 128; g.blkx = False
def cfg_big():
    g.nmi = 4; g.stage = 65536; g.xstep = 128; g.blkx = False
def cfg_n128(blkx):
    g.nmi = 2; g.stage = 49152; g.xstep = 4096 if blkx else 128; g.blkx = blkx

def acc(mi, ni):
    return ACC + (ni * 4 + mi) * 16

def issue_loads(a, buf):
    for i in range(4):
        a(f"""s_add_u32 m0, s26, {buf*g.stage + i*1024}
        s_nop 0
        buffer_load_dwordx4 v{VXG+i}, s[8:11], s23 offen lds""")
    for i in range(4 if g.nmi == 4 else 2):
        a(f"""s_add_u32 m0, s{26 if g.nmi == 4 else 34}, {buf*g.stage + 32768 + i*1024}
        s_nop 0
        buffer_load_dwordx4 v{VWG+i}, s[12:15], s24 offen lds""")
    a(f"""s_add_u32 s23, s23, {g.xstep}
    s_add_u32 s24, s24, s25""")

def read_frags(a, buf, kk, st, perm):
    b = FR + 24 * st
    for ni in range(2):
        for u in range(2):
            a(f"ds_read_b64_tr_b16 {vr(b+16+4*ni+2*u,2)}, v{VWR+2*buf+ni} offset:{kk*4096 + u*(2048 if perm else 1024)}")
    for mi in range(g.nmi):
        if EXP == 1 and mi >= g.nmi // 2:
            a(f"ds_read_b32 v{b+4*mi}, v{VXR+4*buf+kk} offset:{mi*4096}")
            continue
        a(f"ds_read_b128 {vr(b+4*mi)}, v{VXR+4*buf+kk} offset:{mi*4096}")

def compute(a, buf, orient, perm):
    read_frags(a, buf, 0, 0, perm)
    for kk in range(4):
        st = kk & 1
        if kk < 3:
            read_frags(a, buf, kk + 1, st ^ 1, perm)
        b = FR + 24 * st
        for mi in range(g.nmi):
            a(f"s_waitcnt lgkmcnt({(4 + g.nmi if kk < 3 else 0) + g.nmi - 1 - mi})")
            for ni in range(2):
                X, W = b + 4 * mi, b + 16 + 4 * ni
                A, B = (W, X) if orient == 'T' else (X, W)
                d = acc(mi, ni)
                a(f"v_mfma_f32_32x32x16_bf16 {vr(d,16)}, {vr(A)}, {vr(B)}, {vr(d,16)}")

def mfma(a, st, mi, orient):
    b = FR + 24 * st
    for ni in range(2):
        X, W = b + 4 * mi, b + 16 + 4 * ni
        A, B = (W, X) if orient == 'T' else (X, W)
        d = acc(mi, ni)
        a(f"v_mfma_f32_32x32x16_bf16 {vr(d,16)}, {vr(A)}, {vr(B)}, {vr(d,16)}")

def load_list(buf):
    l = []
    for i in range(4):
        l.append(f"""s_add_u32 m0, s26, {buf*g.stage + i*1024}
        s_nop 0
        buffer_load_dwordx4 v{VXG+i}, s[8:11], s23 offen lds""")
    for i in range(4 if g.nmi == 4 else 2):
        l.append(f"""s_add_u32 m0, s{26 if g.nmi == 4 else 34}, {buf*g.stage + 32768 + i*1024}
        s_nop 0
        buffer_load_dwordx4 v{VWG+i}, s[12:15], s24 offen lds""")
    l[-1] += f"""
    s_add_u32 s23, s23, {g.xstep}
    s_add_u32 s24, s24, s25"""
    return l

def mainloop(a, orient, perm=False):
    nb = 3 if g.nmi == 2 else 2
    nl = 6 if g.nmi == 2 else 8
    h = g.nmi // 2
    a(f"s_mov_b64 vcc, 0\ns_waitcnt vmcnt({(nb-1)*nl})\ns_barrier")
    stamp(a, 2)
    read_frags(a, 0, 0, 0, perm)
    L, Le = a.uniq("gl"), a.uniq("ge")
    def slot(q):
        if not q or EXP == 2: return
        Ln = a.uniq("gn")
        a(f"s_cbranch_vccz {Ln}")
        a(q.pop(0))
        a.label(Ln)
    a.label(L)
    for b in range(nb):
        q = load_list((b + nb - 1) % nb)[g.nmi - h:]
        for kk in range(3):
            read_frags(a, b, kk + 1, (kk & 1) ^ 1, perm)
            for mi in range(g.nmi):
                a(f"s_waitcnt lgkmcnt({4 + g.nmi + g.nmi - 1 - mi})")
                mfma(a, kk & 1, mi, orient)
                slot(q)
        assert not q or EXP == 2
        for mi in range(h):
            a(f"s_waitcnt lgkmcnt({g.nmi - 1 - mi})")
            mfma(a, 1, mi, orient)
        a(f"s_cmp_le_u32 s22, 1\ns_waitcnt lgkmcnt(0)\ns_cbranch_scc1 {Le}")
        if nb == 3:
            Lw = a.uniq("gw")
            a(f"s_cmp_gt_u32 s22, 2\ns_cbranch_scc1 {Lw}\ns_waitcnt vmcnt(0)")
            a.label(Lw)
            a(f"s_waitcnt vmcnt({nl})")
        else:
            a("s_waitcnt vmcnt(0)")
        a(f"s_cmp_gt_u32 s22, {nb}\ns_cselect_b64 vcc, -1, 0\ns_barrier")
        read_frags(a, (b + 1) % nb, 0, 0, perm)
        q = load_list(b)[:g.nmi - h]
        for mi in range(h, g.nmi):
            mfma(a, 1, mi, orient)
            slot(q)
        a("s_sub_u32 s22, s22, 1")
        if b == nb - 1: a(f"s_branch {L}")
    a.label(Le)
    for mi in range(h, g.nmi):
        mfma(a, 1, mi, orient)
    a("s_nop 15")
    stamp(a, 3)

def setup(a, perm=False):
    a("""v_and_b32 v1, 63, v0
    v_lshrrev_b32 v2, 6, v0
    s_nop 0
    v_readfirstlane_b32 s27, v2
    s_lshl_b32 s26, s27, 12
    """ + ("s_lshr_b32 s28, s27, 2\ns_and_b32 s29, s27, 3" if g.nmi == 4 else "s_lshr_b32 s28, s27, 1\ns_and_b32 s29, s27, 1\ns_lshl_b32 s34, s27, 11") + """
    v_lshrrev_b32 v2, 3, v1
    v_and_b32 v3, 7, v1
    v_lshrrev_b32 v4, 4, v1
    v_and_b32 v5, 15, v1""")
    for i in range(4):
        a(f"""s_lshl_b32 s36, s27, 5
        s_add_u32 s36, s36, {i*8}
        s_add_u32 s36, s36, s30
        v_add_u32 v6, s36, v2
        v_add_u32 v7, {(i&1)*4}, v4
        v_xor_b32 v7, v7, v3""")
        if g.blkx:
            a(f"""v_lshrrev_b32 v9, 5, v6
            v_lshlrev_b32 v9, 18, v9
            v_and_b32 v6, 31, v6
            v_lshl_add_u32 v9, v6, 5, v9
            v_lshrrev_b32 v6, 1, v7
            v_lshl_add_u32 v9, v6, 10, v9
            v_and_b32 v7, 1, v7
            v_lshl_add_u32 v9, v7, 4, v9
            v_add_u32 v{VXG+i}, s41, v9""")
        else:
            a(f"""v_mul_lo_u32 v6, v6, s20
            v_lshlrev_b32 v7, 4, v7
            v_add3_u32 v{VXG+i}, v6, v7, s41""")
    a("""v_lshlrev_b32 v7, 2, v4
    v_xor_b32 v7, v7, v5
    v_lshlrev_b32 v7, 4, v7""")
    if g.nmi == 4:
        a("""s_lshl_b32 s37, s28, 7
        s_add_u32 s37, s37, s31
        s_lshl_b32 s37, s37, 1""")
    else:
        a("s_lshl_b32 s37, s31, 1")
    for i in range(4 if g.nmi == 4 else 2):
        a(f"""s_lshl_b32 s36, {'s29, 4' if g.nmi == 4 else 's27, 3'}
        s_add_u32 s36, s36, {i*4}
        v_add_u32 v6, s36, v4
        v_mul_lo_u32 v6, v6, s21
        v_add3_u32 v{VWG+i}, v6, v7, s37""")
    stamp(a, 1)
    for b in range(3 if g.nmi == 2 else 2): issue_loads(a, b)
    a("""v_and_b32 v6, 31, v1
    v_lshrrev_b32 v8, 5, v1
    v_bfe_u32 v7, v6, 1, 3
    v_xor_b32 v7, v7, v8
    v_lshlrev_b32 v6, 7, v6
    s_lshl_b32 s36, s28, """ + ("14" if g.nmi == 4 else "13") + """
    v_add_u32 v6, s36, v6""")
    for kk in range(4):
        a(f"""v_xor_b32 v9, {2*kk}, v7
        v_lshl_add_u32 v{VXR+kk}, v9, 4, v6
        v_add_u32 v{VXR+4+kk}, {g.stage}, v{VXR+kk}""")
        if g.nmi == 2: a(f"v_add_u32 v{VXR+8+kk}, {2*g.stage}, v{VXR+kk}")
    a(f"""v_bfe_u32 v6, v1, 2, 2
    v_and_b32 v7, 3, v1
    v_bfe_u32 v9, v1, 4, 1
    v_lshlrev_b32 v40, {2 if perm else 3}, v8
    v_add_u32 v40, v40, v6
    v_lshlrev_b32 v40, 8, v40
    v_lshrrev_b32 v41, 1, v7
    v_lshl_add_u32 v41, v9, 1, v41
    s_and_b32 s36, s29, 1
    s_lshl_b32 s36, s36, 3
    v_add_u32 v41, s36, v41
    v_lshlrev_b32 v42, 2, v6
    v_xor_b32 v41, v41, v42
    v_and_b32 v7, 1, v7
    v_lshl_add_u32 v40, v7, 3, v40
    s_lshr_b32 s36, s29, 1
    s_lshl_b32 s36, s36, 14
    s_add_u32 s36, s36, 32768
    v_add_u32 v40, s36, v40""")
    for ni in range(2):
        a(f"""v_xor_b32 v42, {4*ni}, v41
        v_lshl_add_u32 v{VWR+ni}, v42, 4, v40
        v_add_u32 v{VWR+2+ni}, {g.stage}, v{VWR+ni}""")
        if g.nmi == 2: a(f"v_add_u32 v{VWR+4+ni}, {2*g.stage}, v{VWR+ni}")
    for ni in range(2):
        for mi in range(g.nmi):
            for r in range(16):
                a(f"v_mov_b32 v{acc(mi, ni)+r}, 0")

def cvt8(a, dst, src, scale=False):
    if scale:
        for r in range(8):
            a(f"v_mul_f32 v{src+r}, s40, v{src+r}")
    for r in range(4):
        a(f"v_cvt_pk_bf16_f32 v{dst+r}, v{src+2*r}, v{src+2*r+1}")

def epi_rowmajor_perm(a, ldo, scale):
    a(f"""v_and_b32 v2, 31, v1
    v_lshlrev_b32 v2, 5, v2
    v_lshl_add_u32 v2, v8, 4, v2
    s_lshl_b32 s36, s28, 7
    s_add_u32 s36, s36, s30
    s_mul_i32 s36, s36, {ldo}
    s_add_u32 s36, s36, s33
    s_lshl_b32 s37, s29, 12
    s_add_u32 s36, s36, s37
    v_add_u32 v2, s36, v2
    v_add_u32 v3, {32*ldo}, v2
    v_add_u32 v4, {64*ldo}, v2
    v_add_u32 v5, {96*ldo}, v2""")
    k = 0
    for mi in range(4):
        for ni in range(2):
            for t in range(2):
                T = 32 + 4 * (k & 7); k += 1
                cvt8(a, T, acc(mi, ni) + 8 * t, scale)
                a(f"buffer_store_dwordx4 {vr(T)}, v{2+mi}, s[16:19], 0 offen offset:{(ni*2+t)*1024}")

def epi_colmajor_blk(a):
    a(f"""v_and_b32 v2, 31, v1
    v_lshlrev_b32 v2, 5, v2
    v_lshl_add_u32 v2, v8, 4, v2
    s_lshl_b32 s36, s29, 18
    s_add_u32 s36, s36, s33
    s_lshl_b32 s37, s28, 7
    s_add_u32 s37, s37, s30
    s_lshl_b32 s37, s37, 6
    s_add_u32 s36, s36, s37
    v_add_u32 v2, s36, v2
    v_add_u32 v3, 4096, v2
    v_add_u32 v4, {32*4096}, v2
    v_add_u32 v5, {32*4096+4096}, v2""")
    k = 0
    for ni in range(2):
        for mi in range(4):
            for t in range(2):
                T = 32 + 4 * (k & 7); k += 1
                cvt8(a, T, acc(mi, ni) + 8 * t)
                a(f"buffer_store_dwordx4 {vr(T)}, v{2+ni*2+(mi>>1)}, s[16:19], 0 offen offset:{((mi&1)*2+t)*1024}")

def epi_colmajor_perm(a):
    a(f"""v_and_b32 v2, 31, v1
    s_lshl_b32 s36, s29, 6
    v_add_u32 v2, s36, v2
    v_lshlrev_b32 v2, 12, v2
    s_lshl_b32 s36, s28, 7
    s_add_u32 s36, s36, s30
    s_lshl_b32 s36, s36, 1
    s_add_u32 s36, s36, s33
    v_lshlrev_b32 v3, 4, v8
    v_add3_u32 v2, v2, v3, s36
    v_add_u32 v3, {32*4096}, v2""")
    k = 0
    for ni in range(2):
        for mi in range(4):
            for t in range(2):
                T = 32 + 4 * (k & 7); k += 1
                cvt8(a, T, acc(mi, ni) + 8 * t)
                a(f"buffer_store_dwordx4 {vr(T)}, v{2+ni}, s[16:19], 0 offen offset:{mi*64+t*32}")

def epi_compact(a):
    a(f"""v_and_b32 v2, 31, v1
    s_lshl_b32 s36, s28, 7
    s_add_u32 s36, s36, s30
    v_add_u32 v2, s36, v2
    v_mul_u32_u24 v2, 40, v2
    v_add_u32 v2, s33, v2
    v_add_u32 v3, s35, v8""")
    k = 0
    for ni in range(2):
        for j in range(4):
            a(f"""v_add_u32 v4, {ni*8+2*j}, v3
            v_mul_u32_u24 v5, 0xcccd, v4
            v_lshrrev_b32 v5, 18, v5
            v_mul_u32_u24 v6, 5, v5
            v_sub_u32 v6, v4, v6
            v_mul_u32_u24 v5, 0x14000, v5
            v_lshl_add_u32 v5, v6, 3, v5
            v_add_u32 v{10+k}, v5, v2""")
            for mi in range(4):
                s = acc(mi, ni) + 4 * j
                T = 32 + 2 * ((4 * k + mi) & 15)
                for r in range(4):
                    a(f"v_mul_f32 v{s+r}, s40, v{s+r}")
                a(f"""v_cvt_pk_bf16_f32 v{T}, v{s}, v{s+1}
                v_cvt_pk_bf16_f32 v{T+1}, v{s+2}, v{s+3}
                buffer_store_dwordx2 {vr(T,2)}, v{10+k}, s[16:19], 0 offen offset:{mi*1280}""")
            k += 1

def load_ptr(a, dst, slot):
    a(f"s_load_dwordx2 s[{dst}:{dst+1}], s[0:1], {slot*8}")

def tile_decode(a, base, ntb):
    a(f"""s_sub_u32 s35, s2, {base}
    s_and_b32 s36, s35, 1
    s_lshl_b32 s36, s36, 2
    s_bfe_u32 s37, s35, 0x20003
    s_add_u32 s30, s36, s37
    s_lshl_b32 s30, s30, 8
    s_bfe_u32 s36, s35, 0x20001
    s_mul_i32 s36, s36, {ntb}
    s_lshr_b32 s37, s35, 5
    s_add_u32 s35, s36, s37
    s_lshl_b32 s31, s35, 8""")

def gen_k1(a):
    global TS
    TS = TS1
    name = "proj_kernel"
    kernel_header(a, name)
    cfg_big()
    cB = f32(128 ** -0.5 * LOG2E); cA = f32(20 ** -0.5 * LOG2E)
    stamp(a, 0)
    if TS: a("s_memrealtime s[54:55]\ns_waitcnt lgkmcnt(0)\ns_mov_b32 s70, s54")
    a("""s_cmp_ge_u32 s2, 448
    s_cbranch_scc1 k1_end
    s_load_dwordx2 s[42:43], s[0:1], 88
    s_mov_b32 s23, 0
    s_mov_b32 s24, 0
    s_mov_b32 s41, 0
    s_mov_b32 s40, 1.0
    s_mov_b32 s21, 8192
    s_mov_b32 s25, 524288
    s_cmp_ge_u32 s2, 192
    s_cbranch_scc1 k1_p2
    s_cmp_ge_u32 s2, 128
    s_cbranch_scc1 k1_pa""")
    load_ptr(a, 4, 3); load_ptr(a, 6, 5)
    tile_decode(a, 0, 4)
    a(f"""s_mov_b32 s20, 1280
    s_mov_b32 s22, 10
    s_mov_b32 s40, {cB}
    s_mov_b32 s32, 0
    s_lshl_b32 s33, s31, 6
    s_add_u32 s33, s33, {WS_QB}
    s_waitcnt lgkmcnt(0)""")
    srd(a, 8, 4, 2048*640*2); srd(a, 12, 6, 640*4096*2); srd(a, 16, 42, WS_SIZE)
    a("s_branch k1_T")
    a.label("k1_p2")
    load_ptr(a, 4, 4)
    a(f"""s_mov_b32 s20, 1024
    s_mov_b32 s22, 8
    s_cmp_ge_u32 s2, 320
    s_cbranch_scc1 k1_p3""")
    load_ptr(a, 6, 6)
    tile_decode(a, 192, 4)
    a(f"""s_mov_b32 s32, 0
    s_lshl_b32 s33, s31, 6
    s_add_u32 s33, s33, {WS_KB}
    s_waitcnt lgkmcnt(0)""")
    srd(a, 8, 4, 2048*512*2); srd(a, 12, 6, 512*4096*2); srd(a, 16, 42, WS_SIZE)
    a("s_branch k1_T")
    a.label("k1_p3")
    load_ptr(a, 6, 7)
    tile_decode(a, 320, 4)
    a(f"""s_lshl_b32 s33, s31, 12
    s_add_u32 s33, s33, {WS_VTB}
    s_mov_b32 s32, 0
    s_waitcnt lgkmcnt(0)""")
    srd(a, 8, 4, 2048*512*2); srd(a, 12, 6, 512*4096*2); srd(a, 16, 42, WS_SIZE)
    a("s_branch k1_N")
    a.label("k1_pa")
    load_ptr(a, 4, 0); load_ptr(a, 6, 1)
    tile_decode(a, 128, 2)
    a(f"""s_mov_b32 s20, 1280
    s_mov_b32 s21, 3840
    s_mov_b32 s25, {64*3840}
    s_mov_b32 s22, 10
    s_mov_b32 s32, 1
    s_waitcnt lgkmcnt(0)""")
    srd(a, 8, 4, 2048*640*2); srd(a, 12, 6, 640*1920*2); srd(a, 16, 42, WS_SIZE)
    a(f"""s_cmp_lt_u32 s35, 5
    s_cbranch_scc1 k1_T
    s_sub_u32 s33, s31, 1280
    s_lshl_b32 s33, s33, 12
    s_add_u32 s33, s33, {WS_VTA}""")
    a.label("k1_N")
    setup(a)
    mainloop(a, 'N')
    a("""s_cmp_eq_u32 s32, 0
    s_cbranch_scc1 k1_Nst
    s_lshl_b32 s36, s29, 6
    s_add_u32 s36, s36, s31
    s_cmp_ge_u32 s36, 1920
    s_cbranch_scc1 k1_end""")
    epi_colmajor_perm(a)
    a("s_endpgm")
    a.label("k1_Nst")
    epi_colmajor_blk(a)
    stamp(a, 4)
    stamp_out(a, 5)
    a("s_endpgm")
    a.label("k1_T")
    setup(a)
    mainloop(a, 'T')
    a("s_cmp_eq_u32 s32, 1\ns_cbranch_scc1 k1_compact")
    epi_rowmajor_perm(a, 8192, True)
    stamp(a, 4)
    stamp_out(a, 5)
    a("s_endpgm")
    a.label("k1_compact")
    a(f"""s_lshl_b32 s35, s29, 6
    s_add_u32 s35, s35, s31
    s_mov_b32 s33, {WS_QA}
    s_mov_b32 s40, {cA}
    s_cmp_lt_u32 s35, 640
    s_cbranch_scc1 k1_cq
    s_sub_u32 s35, s35, 640
    s_mov_b32 s33, {WS_KA}
    s_mov_b32 s40, 1.0""")
    a.label("k1_cq")
    a("s_lshr_b32 s35, s35, 2")
    epi_compact(a)
    stamp(a, 4)
    stamp_out(a, 5)
    a.label("k1_end")
    a("s_endpgm")
    return kernel_desc(name, 256)

def epi_part(a):
    a(f"""v_and_b32 v2, 31, v1
    v_lshlrev_b32 v2, 5, v2
    v_lshl_add_u32 v2, v8, 4, v2
    s_lshl_b32 s36, s28, 6
    s_add_u32 s36, s36, s30
    s_mul_i32 s36, s36, 2560
    s_add_u32 s36, s36, s33
    s_lshl_b32 s37, s29, 13
    s_add_u32 s36, s36, s37
    v_add_u32 v2, s36, v2
    v_add_u32 v3, 4096, v2
    v_add_u32 v4, {32*2560}, v2
    v_add_u32 v5, {32*2560+4096}, v2""")
    for mi in range(2):
        for ni in range(2):
            for j in range(4):
                a(f"buffer_store_dwordx4 {vr(acc(mi, ni) + 4*j)}, v{2+2*mi+ni}, s[16:19], 0 offen offset:{j*1024}")

def epi_out(a, fp32):
    esz = 4 if fp32 else 2
    a(f"""v_and_b32 v2, 31, v1
    s_lshl_b32 s36, s28, 6
    s_add_u32 s36, s36, s30
    v_add_u32 v2, s36, v2
    v_mul_u32_u24 v2, 2560, v2
    s_mul_i32 s36, s29, {64*esz}
    s_add_u32 s36, s36, s33
    v_mul_u32_u24 v3, {4*esz}, v8
    v_add3_u32 v2, v2, v3, s36
    v_add_u32 v3, {32*2560}, v2""")
    k = 0
    for ni in range(2):
        for mi in range(2):
            for j in range(4):
                s = acc(mi, ni) + 4 * j
                off = (ni * 32 + 8 * j) * esz
                if fp32:
                    a(f"buffer_store_dwordx4 {vr(s)}, v{2+mi}, s[16:19], 0 offen offset:{off}")
                else:
                    T = 32 + 2 * (k & 7); k += 1
                    a(f"""v_cvt_pk_bf16_f32 v{T}, v{s}, v{s+1}
                    v_cvt_pk_bf16_f32 v{T+1}, v{s+2}, v{s+3}
                    buffer_store_dwordx2 {vr(T,2)}, v{2+mi}, s[16:19], 0 offen offset:{off}""")

def gen_k3(a):
    global TS
    TS = TS3
    name = "oproj_kernel"
    kernel_header(a, name)
    stamp(a, 0)
    if TS: a("s_memrealtime s[54:55]\ns_waitcnt lgkmcnt(0)\ns_mov_b32 s70, s54")
    a("""s_cmp_ge_u32 s2, 200
    s_cbranch_scc1 k3_end
    s_load_dwordx2 s[42:43], s[0:1], 88
    s_mov_b32 s21, 1280
    s_mov_b32 s25, 81920
    s_mov_b32 s23, 0
    s_cmp_ge_u32 s2, 160
    s_cbranch_scc1 k3_p1""")
    load_ptr(a, 6, 8)
    a(f"""s_bfe_u32 s44, s2, 0x20001
    s_and_b32 s36, s2, 1
    s_lshl_b32 s36, s36, 2
    s_bfe_u32 s37, s2, 0x20003
    s_add_u32 s30, s36, s37
    s_lshl_b32 s30, s30, 8
    s_lshr_b32 s31, s2, 5
    s_lshl_b32 s31, s31, 7
    s_mov_b32 s20, 8192
    s_mov_b32 s22, 16
    s_lshl_b32 s41, s44, 16
    s_add_u32 s41, s41, {WS_CTX}
    s_mul_i32 s24, s44, {1024*1280}
    s_mul_i32 s33, s44, {2048*640*4}
    s_add_u32 s33, s33, {WS_PART}
    s_lshl_b32 s45, s31, 7
    s_add_u32 s33, s33, s45
    s_waitcnt lgkmcnt(0)""")
    srd(a, 8, 42, WS_SIZE); srd(a, 12, 6, 4096*640*2); srd(a, 16, 42, WS_SIZE)
    cfg_n128(True)
    setup(a, True)
    mainloop(a, 'T', True)
    epi_part(a)
    stamp(a, 4)
    stamp_out(a, 5)
    a("s_endpgm")
    a.label("k3_p1")
    load_ptr(a, 6, 2); load_ptr(a, 4, 9)
    a(f"""s_sub_u32 s35, s2, 160
    s_and_b32 s30, s35, 7
    s_lshl_b32 s30, s30, 8
    s_lshr_b32 s31, s35, 3
    s_lshl_b32 s31, s31, 7
    s_mov_b32 s20, 1280
    s_mov_b32 s22, 10
    s_mov_b32 s41, {WS_OA}
    s_mov_b32 s24, 0
    s_lshl_b32 s33, s31, 1
    s_waitcnt lgkmcnt(0)""")
    srd(a, 8, 42, WS_SIZE); srd(a, 12, 6, 640*640*2); srd(a, 16, 4, 2048*1280*2)
    cfg_n128(False)
    setup(a)
    mainloop(a, 'T')
    epi_out(a, False)
    a.label("k3_end")
    a("s_endpgm")
    return kernel_desc(name, 256)
```
